```python
import torch

def _softmax(x, axis=-1):
    return torch.softmax(x, dim=axis)
def _gelu(x):
    return torch.nn.functional.gelu(x, approximate="tanh")
def _silu(x):
    return torch.nn.functional.silu(x)
def _sigmoid(x):
    return torch.sigmoid(x)
def _layernorm(x, axis=-1, eps=1e-5):
    m = x.mean(dim=axis, keepdim=True)
    v = x.var(dim=axis, keepdim=True, unbiased=False)
    return (x - m) / torch.sqrt(v + eps)
def _scatter_add(tgt, idx, src, axis=0):
    return tgt.clone().index_add_(axis, idx, src)
def _segment_sum(src, seg, n):
    out = torch.zeros((n,) + src.shape[1:], dtype=src.dtype)
    return out.index_add_(0, seg, src)
def _pad(x, pw):
    flat = tuple(v for pair in reversed(pw) for v in pair)
    return torch.nn.functional.pad(x, flat)

kernel_name = 'concat_heads__ssm_conv_s5__mha_block__prompt'

def setup_inputs():

    _w = (lambda a: (lambda t: t.to(torch.bfloat16) if t.is_floating_point() else t)(torch.as_tensor(a)))
    def _A_setup():
        B, S, D = 1, 2048, 640
        P = D
        Lambda_re = -0.5 * (lambda _x: torch.exp(torch.as_tensor(_x)))((lambda *s: torch.randn(*s, dtype=torch.bfloat16) * 0.8)(P))
        Lambda_im = (lambda *s: torch.randn(*s, dtype=torch.bfloat16) * 0.8)(P) * 1.0
        B_re = (lambda *s: torch.randn(*s, dtype=torch.bfloat16) * 0.8)(P, D) * (D ** -0.5)
        B_im = (lambda *s: torch.randn(*s, dtype=torch.bfloat16) * 0.8)(P, D) * (D ** -0.5)
        C_re = (lambda *s: torch.randn(*s, dtype=torch.bfloat16) * 0.8)(D, P) * (P ** -0.5)
        C_im = (lambda *s: torch.randn(*s, dtype=torch.bfloat16) * 0.8)(D, P) * (P ** -0.5)
        log_dt = (lambda *s: torch.randn(*s, dtype=torch.bfloat16) * 0.8)(P) * 0.3 - 2.0
        Dskip = (lambda *s: torch.randn(*s, dtype=torch.bfloat16) * 0.8)(D)
        return {
            "x": _w((lambda *s: torch.randn(*s, dtype=torch.bfloat16) * 0.05)(B, S, D)),
            "Lambda_re": _w(Lambda_re),
            "Lambda_im": _w(Lambda_im),
            "B_re": _w(B_re),
            "B_im": _w(B_im),
            "C_re": _w(C_re),
            "C_im": _w(C_im),
            "log_dt": _w(log_dt),
            "Dskip": _w(Dskip),
        }
    _A_in = _A_setup()

    def _B_setup():
        B, S, D, H = 1, 2048, 640, 32
        return {
            "x": _w((lambda *s: torch.randn(*s, dtype=torch.bfloat16) * 0.2)(B, S, D)),
            "wqkv": _w((lambda *s: torch.randn(*s, dtype=torch.bfloat16) * 0.2)(D, 3 * D)),
            "wo": _w((lambda *s: torch.randn(*s, dtype=torch.bfloat16) * 0.05)(D, D)),
        }
    _B_in = _B_setup()

    return {
        "A_x": _A_in["x"],
        "A_Lambda_re": _A_in["Lambda_re"],
        "A_Lambda_im": _A_in["Lambda_im"],
        "A_B_re": _A_in["B_re"],
        "A_B_im": _A_in["B_im"],
        "A_C_re": _A_in["C_re"],
        "A_C_im": _A_in["C_im"],
        "A_log_dt": _A_in["log_dt"],
        "A_Dskip": _A_in["Dskip"],
        "B_x": _B_in["x"],
        "B_wqkv": _B_in["wqkv"],
        "B_wo": _B_in["wo"],
    }

def reference(A_x, A_Lambda_re, A_Lambda_im, A_B_re, A_B_im, A_C_re, A_C_im, A_log_dt, A_Dskip, B_x, B_wqkv, B_wo):
    def _A_ref(x, Lambda_re, Lambda_im, B_re, B_im, C_re, C_im, log_dt, Dskip):
        Bsz, L, H = x.shape
        Lam = Lambda_re + 1j * Lambda_im
        Bmat = B_re + 1j * B_im
        Cmat = C_re + 1j * C_im
        dt = torch.exp(log_dt)
        Lam_bar = torch.exp(dt * Lam)
        B_bar = ((Lam_bar - 1.0) / Lam)[:, None] * Bmat
        Bu = torch.einsum("bld,pd->blp", x + 0j, B_bar)
        h = torch.zeros_like(Bu[:, 0, :])
        hs = []
        for t in range(L):
            h = Lam_bar[None, :] * h + Bu[:, t, :]
            hs.append(h)
        hseq = torch.stack(hs, 1)
        y = 2.0 * torch.einsum("blp,dp->bld", hseq, Cmat).real + x * Dskip[None, None, :]
        return y

    def _B_ref(x, wqkv, wo):
        B, S, D = x.shape
        H = 32
        Dh = D // H
        qkv = (lambda x, *d: x.permute(*d))((x @ wqkv).reshape(B, S, 3, H, Dh), 2, 0, 3, 1, 4)
        q, k, v = qkv[0], qkv[1], qkv[2]
        scores = torch.einsum("bhqd,bhkd->bhqk", q, k) * (Dh ** -0.5)
        p = _softmax(scores, axis=-1)
        o = torch.einsum("bhqk,bhkd->bhqd", p, v)
        return (lambda x, *d: x.permute(*d))(o, 0, 2, 1, 3).reshape(B, S, D) @ wo

    a = _A_ref(A_x, A_Lambda_re, A_Lambda_im, A_B_re, A_B_im, A_C_re, A_C_im, A_log_dt, A_Dskip)
    b = _B_ref(B_x, B_wqkv, B_wo)
    return torch.concatenate([a, b], axis=-1)
```

```python
from common import *

O_ = 0
SB = [64, 96]
PA, PB = 128, 136
Q16 = 144
QR = 160
K16 = [164, 168]
KR = [172, 174]
VB = [176, 184]
V_K, V_KR, V_V0, V_V1 = 192, 193, 194, 195
V_LANE, V_T = 196, 198
MX = 208
QR8 = 216
KR8 = [232, 236]
UNROLL = 8


def exp(r):
    return f"v_exp_f32 v{r}, v{r}"


def cvt(d, s):
    return f"v_cvt_pk_bf16_f32 v{d}, v{s}, v{s+1}"


def attn(g, ld_sc="", st_sc="", pfx="at", var=()):
    S_WS = 8
    sWV, sHP, sQB, sH1, sKH, sI, sKO, sVO, sVN, sT0, sT1, sCNT, sKB = range(24, 37)
    g.e(f"s_load_dwordx2 s[44:45], s[0:1], {KA['ws']}")
    g.e(f"v_lshrrev_b32 v{V_T}, 6, v0")
    g.e(f"v_and_b32 v{V_LANE}, 63, v0")
    g.e(f"v_readfirstlane_b32 s{sWV}, v{V_T}")
    g.e(f"s_and_b32 s{sT0}, s2, 7")
    g.e(f"s_lshr_b32 s{sT1}, s2, 3")
    g.e(f"s_and_b32 s{sQB}, s{sT1}, 15")
    g.e(f"s_lshr_b32 s{sT1}, s{sT1}, 4")
    g.e(f"s_lshl_b32 s{sHP}, s{sT0}, 1")
    g.e(f"s_add_u32 s{sHP}, s{sHP}, s{sT1}")
    g.e(f"s_lshr_b32 s{sH1}, s{sWV}, 1")
    g.e(f"s_and_b32 s{sKH}, s{sWV}, 1")
    g.e(f"s_mul_i32 s{sT0}, s{sHP}, {5*512}")
    g.e(f"s_mul_i32 s{sT1}, s{sH1}, {3*512}")
    g.e(f"s_add_u32 s{sT1}, s{sT1}, s{sT0}")
    g.e(f"v_lshlrev_b32 v{V_T}, 4, v{V_LANE}")
    g.e(f"v_add_u32 v{V_T+1}, s{sT1}, v{V_T}")
    g.e(f"v_add_u32 v{V_K}, {QKF + 80*512}, v{V_T+1}")
    g.e(f"v_and_b32 v{V_T}, 31, v{V_LANE}")
    g.e(f"v_lshlrev_b32 v{V_T+2}, 4, v{V_T}")
    g.e(f"s_lshl_b32 s{sT1}, s{sH1}, 3")
    g.e(f"s_add_u32 s{sT0}, s{sT0}, s{sT1}")
    g.e(f"s_add_u32 s{sT0}, s{sT0}, {2*512}")
    g.e(f"v_add_u32 v{V_T+2}, s{sT0}, v{V_T+2}")
    g.e(f"v_add_u32 v{V_KR}, {QKF + 80*512}, v{V_T+2}")
    g.e(f"v_lshrrev_b32 v{V_T+3}, 5, v{V_LANE}")
    g.e(f"v_mul_u32_u24 v{V_T+4}, {QK_TT}, v{V_T+3}")
    g.e(f"v_add_u32 v{V_T+2}, v{V_T+2}, v{V_T+4}")
    g.e(f"s_lshl_b32 s{sT0}, s{sH1}, 2")
    g.e(f"v_add_u32 v{V_T+4}, s{sT0}, v{V_T}")
    g.e(f"v_subrev_u32 v{V_T+5}, 20, v{V_T+4}")
    g.e(f"v_cmp_le_u32 vcc, 20, v{V_T+4}")
    g.e(f"s_mul_i32 s{sT0}, s{sHP}, 40")
    g.e(f"s_mul_i32 s{sT1}, s{sH1}, 20")
    g.e(f"v_cndmask_b32 v{V_T+4}, v{V_T+4}, v{V_T+5}, vcc")
    g.e(f"s_add_u32 s{sT0}, s{sT0}, s{sT1}")
    g.e(f"v_add_u32 v{V_T+4}, s{sT0}, v{V_T+4}")
    g.e(f"v_cmp_le_u32 vcc, 20, v{V_T}")
    g.e(f"v_mov_b32 v{V_T+5}, 640")
    g.e(f"v_mul_u32_u24 v{V_T+3}, {V_ROW}, v{V_T+3}")
    g.e(f"v_cndmask_b32 v{V_T+4}, v{V_T+4}, v{V_T+5}, vcc")
    g.e(f"v_lshl_add_u32 v{V_V0}, v{V_T+4}, 4, v{V_T+3}")
    g.e(f"v_add_u32 v{V_V0}, {VF}, v{V_V0}")
    if "onesall" not in var:
        g.e(f"v_cmp_lt_u32 vcc, 20, v{V_T}")
        g.e(f"v_mov_b32 v{V_T+5}, 0x7f000000")
        g.e("s_nop 0")
        g.e(f"v_cndmask_b32 v{V_V0}, v{V_V0}, v{V_T+5}, vcc")
    g.e(f"v_add_u32 v{V_V1}, {2*V_ROW}, v{V_V0}")
    g.e(f"s_lshl_b32 s{sKB}, s{sKH}, 5")
    g.e(f"s_lshl_b32 s{sI}, s{sQB}, 1")
    g.e("s_waitcnt lgkmcnt(0)")
    srd(g, S_WS, 44, WS_USED)
    SR = f"s[{S_WS}:{S_WS+3}]"

    def next_kt():
        return [f"s_add_u32 s{sT0}, s{sI}, s{sKB}",
                f"s_mul_i32 s{sKO}, s{sT0}, {QK_TT}",
                f"s_mul_i32 s{sVN}, s{sT0}, {V_TT}",
                f"s_add_u32 s{sI}, s{sI}, 1",
                f"s_and_b32 s{sI}, s{sI}, 31"]

    alt = ("x8" in var) or ("x16" in var)

    def ldK(b):
        return [f"buffer_load_dwordx2 {vr(KR8[b] if alt else KR[b],2)}, v{V_KR+(50 if alt else 0)}, {SR}, s{sKO} offen {ld_sc}",
                f"buffer_load_dwordx4 {vr(K16[b],4)}, v{V_K}, {SR}, s{sKO} offen {ld_sc}"]

    def ldV(b, so):
        return [f"buffer_load_dwordx4 {vr(VB[b],4)}, v{V_V0}, {SR}, s{so} offen {ld_sc}",
                f"buffer_load_dwordx4 {vr(VB[b]+4,4)}, v{V_V1}, {SR}, s{so} offen {ld_sc}"]

    def prologue_loads():
        g.e(f"s_mul_i32 s{sT1}, s{sQB}, {4*QK_TT}")
        if QKF:
            g.e(f"s_add_u32 s{sT1}, s{sT1}, {QKF}")
        g.e("\n".join(next_kt()))
        g.e(f"buffer_load_dwordx2 {vr(QR,2)}, v{V_T+2}, {SR}, s{sT1} offen {ld_sc}")
        g.e(ldK(0)[0])
        g.e(f"buffer_load_dwordx4 {vr(Q16,4)}, v{V_T+1}, {SR}, s{sT1} offen {ld_sc}")
        g.e(f"s_add_u32 s{sT1}, s{sT1}, {QK_TT}")
        g.e(f"buffer_load_dwordx4 {vr(Q16+4,4)}, v{V_T+1}, {SR}, s{sT1} offen {ld_sc}")
        g.e(ldK(0)[1])
        g.e(f"s_add_u32 s{sT1}, s{sT1}, {QK_TT}")
        g.e(f"buffer_load_dwordx2 {vr(QR+2,2)}, v{V_T+2}, {SR}, s{sT1} offen {ld_sc}")
        g.e(f"buffer_load_dwordx4 {vr(Q16+8,4)}, v{V_T+1}, {SR}, s{sT1} offen {ld_sc}")
        g.e(f"s_add_u32 s{sT1}, s{sT1}, {QK_TT}")
        g.e(f"buffer_load_dwordx4 {vr(Q16+12,4)}, v{V_T+1}, {SR}, s{sT1} offen {ld_sc}")
        g.e("\n".join(ldV(0, sVN)))
        g.e("\n".join(next_kt()))
        g.e("\n".join(ldK(1)))
        g.e(f"s_mov_b32 s{sVO}, s{sVN}")
        g.e("\n".join(next_kt()))

    def qk2b(S, kb, pair):
        return f"v_mfma_f32_32x32x4_2b_bf16 {vr(S,32)}, {vr(KR[kb],2)}, {vr(QR+2*pair,2)}, 0"

    def qk16(S, kb, qt):
        return mfma16(S, K16[kb], Q16 + 4 * qt)

    def qkrem(S, kb, qt, c=None):
        cs = vr(S, 16) if c is None else c
        if "x8" in var:
            return f"v_mfma_f32_32x32x8_bf16 {vr(S,16)}, {vr(KR8[kb],2)}, {vr(QR8+4*qt,2)}, {cs}"
        return mfma16(S, KR8[kb], QR8 + 4 * qt, c)

    def pv(qt, vb, m, P):
        return mfma16(O_ + 16 * qt, VB[vb] + 4 * m, P + 4 * m)

    stamp(g, 1)
    if alt:
        g.e(f"v_cmp_le_u32 vcc, 32, v{V_LANE}")
        g.e(f"v_mov_b32 v{V_T+5}, 0x7f000000")
        g.e(f"v_subrev_u32 v{V_T+6}, {QKF + 80*512}, v{V_KR}")
        g.e(f"v_cndmask_b32 v{V_KR+50}, v{V_KR}, v{V_T+5}, vcc")
        g.e(f"v_cndmask_b32 v{V_T+6}, v{V_T+6}, v{V_T+5}, vcc")
        for r in range(QR8, QR8 + 24):
            g.e(f"v_mov_b32 v{r}, 0")
        g.e(f"s_mul_i32 s{sT1}, s{sQB}, {4*QK_TT}")
        for qt in range(4):
            g.e(f"buffer_load_dwordx2 {vr(QR8+4*qt,2)}, v{V_T+6}, {SR}, s{sT1} offen {ld_sc}")
            g.e(f"s_add_u32 s{sT1}, s{sT1}, {QK_TT}")
    prologue_loads()
    for r in range(64):
        g.e(f"v_mov_b32 v{O_+r}, 0")
    for r in list(range(PB, PB + 8)) + list(range(VB[1], VB[1] + 8)) + list(range(SB[1] + 28, SB[1] + 32)):
        g.e(f"v_mov_b32 v{r}, 0")
    g.e("s_waitcnt vmcnt(10)")
    if alt:
        g.e(qkrem(SB[0], 0, 0, "0"))
        g.e(qkrem(SB[0] + 16, 0, 1, "0"))
    else:
        g.e(qk2b(SB[0], 0, 0))
    g.e("s_nop 15")
    g.e("s_waitcnt vmcnt(7)")
    g.e("s_nop 3")
    g.e(qk16(SB[0], 0, 0))
    g.e(qk16(SB[0] + 16, 0, 1))
    g.e(f"s_mov_b32 s{sCNT}, {32 // UNROLL}")
    g.e("s_waitcnt vmcnt(4)")
    g.e("s_nop 9")

    def period(kt, p):
        S = SB[p]
        Sn = SB[1 - p]
        kb_cur = kt & 1
        kb = kb_cur if p == 0 else 1 - kb_cur
        pn = 1 - p
        qb_prev = 3 if p == 0 else 1
        vb_prev = 1 - kb_cur if p == 0 else kb_cur
        qa = 2 * p
        pre = {}
        post = {}
        pre[2] = [qk2b(Sn, kb, pn)]
        pre[9] = [pv(qb_prev, vb_prev, 0, PB)]
        pre[13] = [pv(qb_prev, vb_prev, 1, PB)]
        pre[17] = [qk16(Sn, kb, 2 * pn)]
        pre[21] = [pv(qa, kb_cur, 0, PA)]
        pre[25] = [qk16(Sn + 16, kb, 2 * pn + 1)]
        pre[29] = [pv(qa, kb_cur, 1, PA)]
        if alt:
            first16 = "remfirst" not in var
            A0 = mfma16(Sn, K16[kb], Q16 + 4 * (2 * pn), "0") if first16 else qkrem(Sn, kb, 2 * pn, "0")
            A1 = qkrem(Sn, kb, 2 * pn) if first16 else qk16(Sn, kb, 2 * pn)
            B0 = mfma16(Sn + 16, K16[kb], Q16 + 4 * (2 * pn + 1), "0") if first16 else qkrem(Sn + 16, kb, 2 * pn + 1, "0")
            B1 = qkrem(Sn + 16, kb, 2 * pn + 1) if first16 else qk16(Sn + 16, kb, 2 * pn + 1)
            pre = {2: [A0], 6: [A1], 10: [pv(qb_prev, vb_prev, 0, PB)], 13: [pv(qb_prev, vb_prev, 1, PB)],
                   17: [B0], 21: [pv(qa, kb_cur, 0, PA)], 25: [B1], 29: [pv(qa, kb_cur, 1, PA)], 9: []}
        if p == 0:
            v = ldV(1 - kb_cur, sVO)
            k = ldK(kb_cur)
            pre[13].append(v[0])
            pre[17].append(v[1])
            pre[21].insert(0, "s_waitcnt vmcnt(4)")
            pre[25].append(k[0])
            pre[29].append(k[1])
        else:
            pre[2].insert(0, "s_waitcnt vmcnt(4)")
            nk = [f"s_mov_b32 s{sVO}, s{sVN}"] + next_kt()
            pre[9].append(nk[0])
            pre[13].append(nk[1])
            pre[17].append(nk[2])
            pre[21].append(nk[3])
            pre[25].append(nk[4])
            pre[29].append(nk[5])
        out = []
        for n in list(pre):
            if "nopv" in var:
                pre[n] = [x for x in pre[n] if not (x.startswith("v_mfma") and n in (9, 13, 21, 29))]
            if "noqk" in var:
                pre[n] = [x for x in pre[n] if not (x.startswith("v_mfma") and n in (2, 17, 25))]
            if "no2b" in var:
                pre[n] = [x for x in pre[n] if not (x.startswith("v_mfma") and n in (2,))]
        for n in range(32):
            out += pre.get(n, [])
            out.append(exp(S + n) if "noexp" not in var else f"v_mov_b32 v{S+n}, v{S+n}\nv_mov_b32 v{S+n}, v{S+n}")
            if n % 2 == 1:
                k = (n - 3) // 2
                if k < 0:
                    out.append(cvt(PB + 7, Sn + 30))
                else:
                    P = PA + k if k < 8 else PB + k - 8
                    out.append(cvt(P, S + 2 * k))
        return out

    stamp(g, 2); stamp_real(g, 11)
    g.raw(".p2align 6")
    g.lab(f"{pfx}_loop")
    for kt in range(UNROLL):
        for p in range(2):
            g.e("\n".join(period(kt, p)))
    g.e(f"s_sub_u32 s{sCNT}, s{sCNT}, 1")
    g.e(f"s_cmp_lg_u32 s{sCNT}, 0")
    g.e(f"s_cbranch_scc1 {pfx}_loop")
    stamp(g, 3); stamp_real(g, 12)
    g.e(cvt(PB + 7, SB[1] + 30))
    g.e(pv(3, 1, 0, PB))
    g.e("s_nop 0")
    g.e(pv(3, 1, 1, PB))
    g.e("s_waitcnt vmcnt(0)")
    g.e("s_nop 10")
    T = V_T
    g.lab(f"{pfx}_check")
    g.e("s_mov_b64 s[40:41], 0")
    g.e(f"v_mov_b32 v{T+1}, 0x207")
    for qt in range(4):
        b = O_ + 16 * qt
        g.e(f"v_add_f32 v{T+2}, v{b}, v{b+1}")
        g.e(f"v_add_f32 v{T+3}, v{b+2}, v{b+3}")
        g.e(f"v_add_f32 v{T+4}, v{b+4}, v{b+5}")
        g.e(f"v_add_f32 v{T+5}, v{b+6}, v{b+7}")
        g.e(f"v_add_f32 v{T+2}, v{T+2}, v{T+3}")
        g.e(f"v_add_f32 v{T+4}, v{T+4}, v{T+5}")
        g.e(f"v_add_f32 v{T+3}, v{b+8}, v{b+9}")
        g.e(f"v_add_f32 v{T+5}, v{b+10}, v{b+11}")
        g.e(f"v_add_f32 v{T+2}, v{T+2}, v{T+4}")
        g.e(f"v_add_f32 v{T+3}, v{T+3}, v{T+5}")
        g.e(f"v_add_f32 v{T+2}, v{T+2}, v{T+3}")
        g.e(f"v_cmp_class_f32 vcc, v{T+2}, v{T+1}")
        g.e("s_or_b64 s[40:41], s[40:41], vcc")
        g.e(f"v_cmp_nle_f32 vcc, 0x17800000, v{b+8}")
        g.e("s_or_b32 s41, s41, vcc_hi")
        g.e(f"v_cmp_nge_f32 vcc, 0x67800000, v{b+8}")
        g.e("s_or_b32 s41, s41, vcc_hi")
    g.e("s_or_b32 s40, s40, s41")
    g.lab(f"{pfx}_reduce")
    g.e(f"v_lshlrev_b32 v{T}, 4, v{V_LANE}")
    g.e(f"s_mul_i32 s{sT0}, s{sWV}, 6144")
    g.e(f"v_add_u32 v{T+1}, s{sT0}, v{T}")
    g.e(f"s_xor_b32 s{sT1}, s{sWV}, 1")
    g.e(f"s_mul_i32 s{sT1}, s{sT1}, 6144")
    g.e(f"v_add_u32 v{T+2}, s{sT1}, v{T}")
    g.e(f"s_lshl_b32 s{sT0}, s{sWV}, 2")
    g.e(f"v_mov_b32 v{T+3}, s{sT0}")
    g.e(f"v_mov_b32 v{T+4}, s40")
    g.e(f"ds_write_b32 v{T+3}, v{T+4} offset:24576")
    g.e(f"s_cmp_eq_u32 s{sKH}, 0")
    g.e(f"s_cbranch_scc1 {pfx}_kh0")
    for qt in range(2):
        for j in range(3):
            g.e(f"ds_write_b128 v{T+1}, {vr(O_+16*qt+4*j,4)} offset:{1024*(3*qt+j)}")
    for qt in range(2):
        for r in range(12):
            g.e(f"v_mov_b32 v{SB[0]+16*qt+r}, v{O_+32+16*qt+r}")
    g.e(f"s_branch {pfx}_kh")
    g.lab(f"{pfx}_kh0")
    for qt in range(2):
        for j in range(3):
            g.e(f"ds_write_b128 v{T+1}, {vr(O_+32+16*qt+4*j,4)} offset:{1024*(3*qt+j)}")
    for qt in range(2):
        for r in range(12):
            g.e(f"v_mov_b32 v{SB[0]+16*qt+r}, v{O_+16*qt+r}")
    g.lab(f"{pfx}_kh")
    g.e("s_waitcnt lgkmcnt(0)")
    g.e("s_barrier")
    g.e(f"v_mov_b32 v{T+3}, 0")
    g.e(f"ds_read_b128 {vr(T+6,4)}, v{T+3} offset:24576")
    for qt in range(2):
        for j in range(3):
            g.e(f"ds_read_b128 {vr(SB[1]+16*qt+4*j,4)}, v{T+2} offset:{1024*(3*qt+j)}")
    g.e("s_waitcnt lgkmcnt(6)")
    g.e(f"v_or3_b32 v{T+6}, v{T+6}, v{T+7}, v{T+8}")
    g.e(f"v_or_b32 v{T+6}, v{T+6}, v{T+9}")
    g.e("s_nop 0")
    g.e(f"v_readfirstlane_b32 s40, v{T+6}")
    g.e("s_nop 3")
    g.e("s_cmp_lg_u32 s40, 0")
    g.e(f"s_cbranch_scc1 {pfx}_slow")
    g.e(f"s_lshl_b32 s{sT0}, s{sQB}, 2")
    g.e(f"s_lshl_b32 s{sT1}, s{sKH}, 1")
    g.e(f"s_add_u32 s{sT0}, s{sT0}, s{sT1}")
    g.e(f"s_mul_i32 s{sT0}, s{sT0}, {O_TT}")
    g.e(f"s_add_u32 s{sT0}, s{sT0}, {OF}")
    g.e(f"s_add_u32 s{sT1}, s{sT0}, {O_TT}")
    g.e(f"v_subrev_u32 v{T+3}, {QKF + 80*512}, v{V_K}")
    g.e(f"v_subrev_u32 v{T+4}, {QKF + 80*512}, v{V_KR}")
    g.e(f"v_mov_b32 v{T+5}, 0x7ffffff0")
    g.e(f"v_cmp_le_u32 vcc, 32, v{V_LANE}")
    g.e("s_waitcnt lgkmcnt(0)")
    g.e(f"v_cndmask_b32 v{T+4}, v{T+4}, v{T+5}, vcc")
    for qt in range(2):
        a = SB[0] + 16 * qt
        b = SB[1] + 16 * qt
        for r in range(12):
            g.e(f"v_add_f32 v{a+r}, v{a+r}, v{b+r}")
        g.e(f"v_mov_b32 v{a+12}, v{a+8}")
        g.e(f"v_mov_b32 v{a+13}, v{a+8}")
        g.e("s_nop 1")
        g.e(f"v_permlane32_swap_b32 v{a+12}, v{a+13}")
        g.e("s_nop 1")
        g.e(f"v_rcp_f32 v{a+13}, v{a+13}")
        g.e("s_nop 0")
        for r in range(12):
            g.e(f"v_mul_f32 v{a+r}, v{a+r}, v{a+13}")
        for q in range(6):
            g.e(cvt(b + q, a + 2 * q))
        g.e("s_nop 1")
        g.e(f"v_permlane32_swap_b32 v{b}, v{b+2}")
        g.e(f"v_permlane32_swap_b32 v{b+1}, v{b+3}")
        g.e(f"buffer_store_dwordx4 {vr(b,4)}, v{T+3}, {SR}, s{sT0+qt} offen {st_sc}")
        g.e(f"buffer_store_dwordx2 {vr(b+4,2)}, v{T+4}, {SR}, s{sT0+qt} offen {st_sc}")
    g.e(f"s_branch {pfx}_done")

    g.lab(f"{pfx}_slow")
    g.e("s_waitcnt lgkmcnt(0)")
    g.e("s_barrier")
    for qt in range(4):
        g.e(f"v_mov_b32 v{MX+qt}, 0xff800000")

    def s_tiles(pair):
        if alt:
            g.e(qkrem(SB[0], 0, 2 * pair, "0"))
            g.e(qkrem(SB[0] + 16, 0, 2 * pair + 1, "0"))
        else:
            g.e(qk2b(SB[0], 0, pair))
        g.e("s_nop 15")
        g.e("s_nop 3")
        g.e(qk16(SB[0], 0, 2 * pair))
        g.e(qk16(SB[0] + 16, 0, 2 * pair + 1))
        g.e("s_nop 15")

    g.e(f"s_mov_b32 s{sCNT}, 32")
    g.lab(f"{pfx}_s1")
    g.e("\n".join(next_kt()))
    g.e("\n".join(ldK(0)))
    g.e("s_waitcnt vmcnt(0)")
    for pair in range(2):
        s_tiles(pair)
        for t in range(2):
            for r in range(0, 16, 2):
                g.e(f"v_max3_f32 v{MX+2*pair+t}, v{SB[0]+16*t+r}, v{SB[0]+16*t+r+1}, v{MX+2*pair+t}")
    g.e(f"s_sub_u32 s{sCNT}, s{sCNT}, 1")
    g.e(f"s_cmp_lg_u32 s{sCNT}, 0")
    g.e(f"s_cbranch_scc1 {pfx}_s1")
    for qt in range(4):
        g.e(f"v_mov_b32 v{MX+4}, v{MX+qt}")
        g.e(f"v_mov_b32 v{MX+5}, v{MX+qt}")
        g.e("s_nop 1")
        g.e(f"v_permlane32_swap_b32 v{MX+4}, v{MX+5}")
        g.e("s_nop 1")
        g.e(f"v_max_f32 v{MX+qt}, v{MX+4}, v{MX+5}")
    g.e(f"ds_write_b128 v{T+1}, {vr(MX,4)}")
    g.e("s_waitcnt lgkmcnt(0)")
    g.e("s_barrier")
    g.e(f"ds_read_b128 {vr(MX+4,4)}, v{T+2}")
    g.e("s_waitcnt lgkmcnt(0)")
    g.e("s_barrier")
    for qt in range(4):
        g.e(f"v_max_f32 v{MX+qt}, v{MX+qt}, v{MX+4+qt}")
    for r in range(64):
        g.e(f"v_mov_b32 v{O_+r}, 0")
    g.e(f"s_mov_b32 s{sCNT}, 32")
    g.lab(f"{pfx}_s2")
    g.e("\n".join(next_kt()))
    g.e("\n".join(ldK(0)))
    g.e("\n".join(ldV(0, sVN)))
    g.e("s_waitcnt vmcnt(0)")
    for pair in range(2):
        s_tiles(pair)
        for t in range(2):
            for r in range(16):
                g.e(f"v_sub_f32 v{SB[0]+16*t+r}, v{SB[0]+16*t+r}, v{MX+2*pair+t}")
            for r in range(16):
                g.e(exp(SB[0] + 16 * t + r))
            g.e("s_nop 0")
            for k in range(8):
                g.e(cvt(PA + k, SB[0] + 16 * t + 2 * k))
            g.e("s_nop 1")
            g.e(pv(2 * pair + t, 0, 0, PA))
            g.e(pv(2 * pair + t, 0, 1, PA))
    g.e(f"s_sub_u32 s{sCNT}, s{sCNT}, 1")
    g.e(f"s_cmp_lg_u32 s{sCNT}, 0")
    g.e(f"s_cbranch_scc1 {pfx}_s2")
    g.e("s_nop 15")
    g.e("s_mov_b32 s40, 0")
    g.e(f"s_branch {pfx}_reduce")
    g.lab(f"{pfx}_done")
    stamp(g, 4)
```

```python
NAME = "concat_heads__ssm_conv_s5__mha_block__prompt"

KA = dict(A_x=0, Lre=8, Lim=16, B_re=24, B_im=32, C_re=40, C_im=48, log_dt=56, Dskip=64,
          B_x=72, wqkv=80, wo=88, out=96, dbg=104, ws=112)

QKF = 0x0
QK_TT = 81920
VF = 0x500000
V_ROW = 648 * 16
V_TT = 4 * V_ROW
OF = 0x800000
O_TT = 80 * 512
HT = 0xB00000
H_TT = 81920
AGG = 0x1000000
FLG = 0x1020000
WS_USED = 0x1040000

SRD3 = 0x00020000


class Asm:
    def __init__(self):
        self.L = []

    def e(self, s):
        for ln in s.split("\n"):
            ln = ln.strip()
            if ln:
                self.L.append("    " + ln)

    def lab(self, l):
        self.L.append(l + ":")

    def raw(self, s):
        self.L.append(s)

    def c(self, s):
        self.L.append("    ; " + s)

    def text(self):
        return "\n".join(self.L) + "\n"


def vr(a, n=1):
    return f"v{a}" if n == 1 else f"v[{a}:{a+n-1}]"


def sr(a, n=1):
    return f"s{a}" if n == 1 else f"s[{a}:{a+n-1}]"


def mfma16(d, a, b, c=None):
    cs = vr(d, 16) if c is None else c
    return f"v_mfma_f32_32x32x16_bf16 {vr(d,16)}, {vr(a,4)}, {vr(b,4)}, {cs}"


def srd(g, d, base, nbytes):
    g.e(f"s_mov_b32 s{d}, s{base}")
    g.e(f"s_mov_b32 s{d+1}, s{base+1}")
    g.e(f"s_mov_b32 s{d+2}, {nbytes}")
    g.e(f"s_mov_b32 s{d+3}, 0x{SRD3:08x}")


def interleave(main, fill, positions=None):
    out = []
    for i, m in enumerate(main):
        out.append(m)
        if i < len(fill):
            out += fill[i]
    for j in range(len(main), len(fill)):
        out += fill[j]
    return out


def kernel_tail(name, nvgpr=256, nsgpr=96):
    acc = min(256, (nvgpr + 3) // 4 * 4)
    return f""".amdhsa_kernel {name}
  .amdhsa_next_free_vgpr {nvgpr}
  .amdhsa_next_free_sgpr {nsgpr}
  .amdhsa_accum_offset {acc}
  .amdhsa_group_segment_fixed_size 0
  .amdhsa_kernarg_size 120
  .amdhsa_user_sgpr_count 2
  .amdhsa_user_sgpr_kernarg_segment_ptr 1
  .amdhsa_system_sgpr_workgroup_id_x 1
.end_amdhsa_kernel
"""


STAMPS = False
ST_BASE = 0x2000000


def stamp(g, idx):
    if not STAMPS:
        return
    g.e("s_memtime s[90:91]")
    g.e("s_waitcnt lgkmcnt(0)")
    g.e(f"s_mov_b32 s{70+idx}, s90")


def stamp_real(g, idx):
    if not STAMPS:
        return
    g.e("s_memrealtime s[90:91]")
    g.e("s_waitcnt lgkmcnt(0)")
    g.e(f"s_mov_b32 s{70+idx}, s90")


def stamp_init(g):
    if not STAMPS:
        return
    for i in range(16):
        g.e(f"s_mov_b32 s{70+i}, 0")
    g.e("s_mov_b32 s87, s2")


def stamp_flush(g, wave_s, vt):
    if not STAMPS:
        return
    g.e(f"s_load_dwordx2 s[92:93], s[0:1], {KA['ws']}")
    g.e("s_getreg_b32 s83, hwreg(HW_REG_HW_ID)")
    g.e("s_getreg_b32 s88, hwreg(HW_REG_XCC_ID)")
    g.e("s_lshl_b32 s88, s88, 28")
    g.e("s_and_b32 s83, s83, 0xfffffff")
    g.e("s_or_b32 s83, s83, s88")
    g.e("s_waitcnt lgkmcnt(0)")
    g.e("s_mov_b32 s94, 0x4000000")
    g.e(f"s_mov_b32 s95, 0x{SRD3:08x}")
    g.e("s_lshl_b32 s86, s87, 2")
    g.e(f"s_add_u32 s86, s86, s{wave_s}")
    g.e("s_lshl_b32 s86, s86, 6")
    g.e(f"s_add_u32 s86, s86, {ST_BASE}")
    g.e(f"v_mov_b32 v{vt}, 0")
    for i in range(16):
        g.e(f"v_mov_b32 v{vt+1}, s{70+i}")
        g.e(f"buffer_store_dword v{vt+1}, v{vt}, s[92:95], s86 offen offset:{4*i}")
    g.e("s_waitcnt vmcnt(0)")
```

```python
from common import *
from gemm import *

ACC = 64
FS = [128, 192]
V_XD = 1
V_WD = 5
V_XA = 10
V_WA = 18
V_LANE = 22
V_T = 24
QSCALE = 1.4426950408889634 / (20 ** 0.5)


def f32hex(x):
    import struct
    return "0x%08x" % struct.unpack("<I", struct.pack("<f", x))[0]


def g3(g, sc="", rot=True, pfx="g3", done_label=None):
    S_X, S_W, S_WS = 8, 12, 16
    sWV, sTB, sCT, sXO, sXB, sXE, sWO, sWB, sWE, sM0, sT0, sT1 = range(24, 36)
    g.e(f"s_load_dwordx4 s[40:43], s[0:1], {KA['B_x']}")
    g.e(f"s_load_dwordx2 s[44:45], s[0:1], {KA['ws']}")
    g.e(f"v_lshrrev_b32 v{V_T}, 6, v0")
    g.e(f"v_and_b32 v{V_LANE}, 63, v0")
    g.e(f"v_readfirstlane_b32 s{sWV}, v{V_T}")
    g.e(f"s_and_b32 s{sT0}, s2, 7")
    g.e(f"s_lshr_b32 s{sT1}, s2, 3")
    g.e(f"s_and_b32 s{sCT}, s{sT0}, 1")
    g.e(f"s_mul_i32 s{sCT}, s{sCT}, 30")
    g.e(f"s_add_u32 s{sT1}, s{sT1}, s{sCT}")
    g.e(f"s_lshr_b32 s{sCT}, s{sT1}, 2")
    g.e(f"s_and_b32 s{sT1}, s{sT1}, 3")
    g.e(f"s_lshr_b32 s{sT0}, s{sT0}, 1")
    g.e(f"s_lshl_b32 s{sTB}, s{sT0}, 2")
    g.e(f"s_add_u32 s{sTB}, s{sTB}, s{sT1}")
    if rot:
        g.e(f"s_mul_i32 s{sT1}, s{sT1}, 3")
        g.e(f"s_add_u32 s{sT1}, s{sT1}, s{sCT}")
        g.e(f"s_cmp_ge_u32 s{sT1}, 10")
        g.e(f"s_cselect_b32 s{sT0}, 10, 0")
        g.e(f"s_sub_u32 s{sT1}, s{sT1}, s{sT0}")
        g.e(f"s_cmp_ge_u32 s{sT1}, 10")
        g.e(f"s_cselect_b32 s{sT0}, 10, 0")
        g.e(f"s_sub_u32 s{sT1}, s{sT1}, s{sT0}")
    else:
        g.e(f"s_mov_b32 s{sT1}, 0")
    g.e(f"s_mul_i32 s{sXB}, s{sTB}, {128*1280}")
    g.e(f"s_add_u32 s{sXE}, s{sXB}, 1280")
    g.e(f"s_lshl_b32 s{sXO}, s{sT1}, 7")
    g.e(f"s_add_u32 s{sXO}, s{sXO}, s{sXB}")
    g.e(f"s_lshl_b32 s{sWB}, s{sCT}, 8")
    g.e(f"s_add_u32 s{sWE}, s{sWB}, {640*3840}")
    g.e(f"s_mul_i32 s{sWO}, s{sT1}, {64*3840}")
    g.e(f"s_add_u32 s{sWO}, s{sWO}, s{sWB}")
    g.e(f"s_lshl_b32 s{sM0}, s{sWV}, 12")
    g.e(f"s_mul_i32 s{sT0}, s{sWV}, {32*1280}")
    direct_dma_voff(g, V_XD, V_LANE, V_T, V_T + 1, 1280, 4, sT0)
    g.e(f"v_lshrrev_b32 v{V_T}, 4, v{V_LANE}")
    g.e(f"v_lshlrev_b32 v{V_T+1}, 2, v{V_T}")
    g.e(f"v_xor_b32 v{V_T+1}, v{V_T+1}, v{V_LANE}")
    g.e(f"v_and_b32 v{V_T+1}, 15, v{V_T+1}")
    g.e(f"v_lshlrev_b32 v{V_T+1}, 4, v{V_T+1}")
    g.e(f"v_mul_u32_u24 v{V_T}, 3840, v{V_T}")
    g.e(f"v_add_u32 v{V_T}, v{V_T}, v{V_T+1}")
    g.e(f"s_mul_i32 s{sT0}, s{sWV}, {16*3840}")
    g.e(f"v_add_u32 v{V_WD}, s{sT0}, v{V_T}")
    for i in range(1, 4):
        g.e(f"v_add_u32 v{V_WD+i}, {i*(4*3840-1024)}, v{V_WD}")
    g.e("s_waitcnt lgkmcnt(0)")
    srd(g, S_X, 40, 2048 * 1280)
    srd(g, S_W, 42, 640 * 3840)

    def xdma(stage, slot):
        o = [f"s_add_u32 m0, s{sM0}, {slot*SLOT}"]
        for i in range(4):
            o.append(f"buffer_load_dwordx4 v{V_XD+i}, s[{S_X}:{S_X+3}], s{sXO} offen offset:{1024*i} lds")
        o[-1] += f"\ns_add_u32 s{sXO}, s{sXO}, 128\ns_cmp_eq_u32 s{sXO}, s{sXE}\ns_cselect_b32 s{sXO}, s{sXB}, s{sXO}"
        o[0] += "\ns_nop 0"
        return o

    def wdma(stage, slot):
        o = [f"s_add_u32 m0, s{sM0}, {slot*SLOT}\ns_nop 0"]
        for i in range(4):
            o.append(f"buffer_load_dwordx4 v{V_WD+i}, s[{S_W}:{S_W+3}], s{sWO} offen offset:{1024*i} lds")
        o[-1] += f"\ns_add_u32 s{sWO}, s{sWO}, {64*3840}\ns_cmp_eq_u32 s{sWO}, s{sWE}\ns_cselect_b32 s{sWO}, s{sWB}, s{sWO}"
        return o

    def xreads(stage, slot, st):
        return direct_reads(V_XA, slot, lambda ti, s: FS[st] + 4 * (2 * s + ti), [0, 4096])

    def wreads(stage, slot, st):
        out = []
        for s in range(4):
            for b in range(2):
                for j in range(2):
                    hi, imm = lds_off(slot, 4096 * s + 1024 * j)
                    d = FS[st] + 32 + 4 * (2 * s + b) + 2 * j
                    out.append(f"ds_read_b64_tr_b16 {vr(d,2)}, v{V_WA + b + (2 if hi else 0)} offset:{imm}")
        return out

    def rd_addrs(isv):
        g.e(f"v_and_b32 v{V_T}, 31, v{V_LANE}")
        g.e(f"s_lshr_b32 s{sT0}, s{sWV}, 1")
        g.e(f"s_lshl_b32 s{sT0}, s{sT0}, 6")
        g.e(f"v_add_u32 v{V_T}, s{sT0}, v{V_T}")
        g.e(f"v_lshrrev_b32 v{V_T+1}, 5, v{V_LANE}")
        direct_rd_addr(g, V_XA, V_T, V_T + 1, V_T + 2)
        g.e(f"v_bfe_u32 v{V_T}, v{V_LANE}, 2, 2")
        g.e(f"v_lshlrev_b32 v{V_T+2}, 3, v{V_T+1}")
        g.e(f"v_add_u32 v{V_T+2}, v{V_T+2}, v{V_T}")
        g.e(f"v_lshlrev_b32 v{V_T+2}, 8, v{V_T+2}")
        g.e(f"s_and_b32 s{sT0}, s{sWV}, 1")
        g.e(f"s_lshl_b32 s{sT0}, s{sT0}, 1")
        g.e(f"v_xor_b32 v{V_T+3}, s{sT0}, v{V_T}")
        g.e(f"v_lshlrev_b32 v{V_T+3}, 6, v{V_T+3}")
        g.e(f"v_add_u32 v{V_T+2}, v{V_T+2}, v{V_T+3}")
        if isv:
            g.e(f"v_and_b32 v{V_T+3}, 3, v{V_LANE}")
        else:
            g.e(f"v_and_b32 v{V_T+3}, 1, v{V_LANE}")
            g.e(f"v_lshlrev_b32 v{V_T+3}, 1, v{V_T+3}")
            g.e(f"v_bfe_u32 v{V_T+4}, v{V_LANE}, 1, 1")
            g.e(f"v_or_b32 v{V_T+3}, v{V_T+3}, v{V_T+4}")
        g.e(f"v_bfe_u32 v{V_T+4}, v{V_LANE}, 4, 1")
        g.e(f"v_lshl_add_u32 v{V_T+3}, v{V_T+4}, 2, v{V_T+3}")
        g.e(f"v_lshl_add_u32 v{V_WA}, v{V_T+3}, 3, v{V_T+2}")
        g.e(f"v_xor_b32 v{V_WA+1}, 64, v{V_WA}")
        g.e(f"v_add_u32 v{V_WA+2}, {4*SLOT}, v{V_WA}")
        g.e(f"v_add_u32 v{V_WA+3}, {4*SLOT}, v{V_WA+1}")

    def mk_mfmas(isv):
        def f(s, st):
            out = []
            for ks in range(4):
                for a in range(2):
                    for b in range(2):
                        X = FS[st] + 4 * (2 * ks + a)
                        W = FS[st] + 32 + 4 * (2 * ks + b)
                        d = ACC + 16 * (2 * a + b)
                        c = "0" if (s == 0 and ks == 0) else None
                        out.append(mfma16(d, X, W, c) if isv else mfma16(d, W, X, c))
            return out
        return f

    g.e(f"s_cmp_ge_u32 s{sCT}, 10")
    g.e(f"s_cbranch_scc1 {pfx}_v")
    rd_addrs(False)
    gemm_core(g, 10, Chunk(4, xdma, xreads), Chunk(4, wdma, wreads), mk_mfmas(False))
    srd(g, S_WS, 44, WS_USED)
    g.e(f"v_lshlrev_b32 v{V_T}, 4, v{V_LANE}")
    g.e(f"s_lshr_b32 s{sT0}, s{sWV}, 1")
    g.e(f"s_lshl_b32 s{sT0}, s{sT0}, 1")
    g.e(f"s_lshl_b32 s{sT1}, s{sTB}, 2")
    g.e(f"s_add_u32 s{sT0}, s{sT0}, s{sT1}")
    g.e(f"s_mul_i32 s{sT0}, s{sT0}, {QK_TT}")
    g.e(f"s_lshl_b32 s{sT1}, s{sCT}, 13")
    g.e(f"s_add_u32 s{sT0}, s{sT0}, s{sT1}")
    g.e(f"s_and_b32 s{sT1}, s{sWV}, 1")
    g.e(f"s_lshl_b32 s{sT1}, s{sT1}, 12")
    g.e(f"s_add_u32 s{sT0}, s{sT0}, s{sT1}")
    if QKF:
        g.e(f"s_add_u32 s{sT0}, s{sT0}, {QKF}")
    g.e(f"s_add_u32 s{sT1}, s{sT0}, {QK_TT}")
    g.e("s_nop 7")
    g.e(f"s_cmp_ge_u32 s{sCT}, 5")
    g.e(f"s_cbranch_scc1 {pfx}_noscale")
    g.e(f"s_mov_b32 s36, {f32hex(QSCALE)}")
    g.e(f"s_mov_b32 s37, s36")
    for r in range(0, 64, 2):
        g.e(f"v_pk_mul_f32 {vr(ACC+r,2)}, {vr(ACC+r,2)}, s[36:37]")
    g.lab(f"{pfx}_noscale")
    for a in range(2):
        for b in range(2):
            for m in range(2):
                src = ACC + 16 * (2 * a + b) + 8 * m
                d = FS[0] + 4 * (4 * a + 2 * b + m)
                for q in range(4):
                    g.e(f"v_cvt_pk_bf16_f32 v{d+q}, v{src+2*q}, v{src+2*q+1}")
                g.e(f"buffer_store_dwordx4 {vr(d,4)}, v{V_T}, s[{S_WS}:{S_WS+3}], s{sT0+a} offen offset:{2048*b+1024*m} {sc}")
    g.e(f"s_branch {pfx}_done")
    g.lab(f"{pfx}_v")
    rd_addrs(True)
    gemm_core(g, 10, Chunk(4, xdma, xreads), Chunk(4, wdma, wreads), mk_mfmas(True))
    srd(g, S_WS, 44, WS_USED)
    g.e(f"v_lshrrev_b32 v{V_T}, 5, v{V_LANE}")
    g.e(f"v_mul_u32_u24 v{V_T}, {V_ROW}, v{V_T}")
    g.e(f"v_and_b32 v{V_T+1}, 31, v{V_LANE}")
    g.e(f"v_lshl_add_u32 v{V_T}, v{V_T+1}, 4, v{V_T}")
    g.e(f"v_add_u32 v{V_T+1}, {2*V_ROW}, v{V_T}")
    g.e(f"s_lshr_b32 s{sT0}, s{sWV}, 1")
    g.e(f"s_lshl_b32 s{sT0}, s{sT0}, 1")
    g.e(f"s_lshl_b32 s{sT1}, s{sTB}, 2")
    g.e(f"s_add_u32 s{sT0}, s{sT0}, s{sT1}")
    g.e(f"s_mul_i32 s{sT0}, s{sT0}, {V_TT}")
    g.e(f"s_sub_u32 s{sT1}, s{sCT}, 10")
    g.e(f"s_lshl_b32 s{sT1}, s{sT1}, 11")
    g.e(f"s_add_u32 s{sT0}, s{sT0}, s{sT1}")
    g.e(f"s_and_b32 s{sT1}, s{sWV}, 1")
    g.e(f"s_lshl_b32 s{sT1}, s{sT1}, 10")
    g.e(f"s_add_u32 s{sT0}, s{sT0}, s{sT1}")
    g.e(f"s_add_u32 s{sT0}, s{sT0}, {VF}")
    g.e(f"s_add_u32 s{sT1}, s{sT0}, {V_TT}")
    g.e("s_nop 7")
    for a in range(2):
        for b in range(2):
            for m in range(2):
                src = ACC + 16 * (2 * a + b) + 8 * m
                d = FS[0] + 4 * (4 * a + 2 * b + m)
                for q in range(4):
                    g.e(f"v_cvt_pk_bf16_f32 v{d+q}, v{src+2*q}, v{src+2*q+1}")
                g.e(f"buffer_store_dwordx4 {vr(d,4)}, v{V_T+m}, s[{S_WS}:{S_WS+3}], s{sT0+a} offen offset:{512*b} {sc}")
    g.e(f"s_cmp_eq_u32 s{sCT}, 14")
    g.e(f"s_cbranch_scc0 {pfx}_done")
    g.e(f"s_lshl_b32 s{sT0}, s{sTB}, 2")
    g.e(f"s_add_u32 s{sT0}, s{sT0}, s{sWV}")
    g.e(f"s_mul_i32 s{sT0}, s{sT0}, {V_TT}")
    g.e(f"s_add_u32 s{sT0}, s{sT0}, {VF + 640*16}")
    g.e(f"v_and_b32 v{V_T}, 3, v{V_LANE}")
    g.e(f"v_mul_u32_u24 v{V_T}, {V_ROW}, v{V_T}")
    for q in range(4):
        g.e(f"v_mov_b32 v{V_T+2+q}, 0x3f803f80")
    g.e(f"buffer_store_dwordx4 {vr(V_T+2,4)}, v{V_T}, s[{S_WS}:{S_WS+3}], s{sT0} offen {sc}")
    g.lab(f"{pfx}_done")
```

```python
from common import *

G4_ACC = 0
G4_A = 64
G4_B = [32, 48]
G4_T = 224
G4_LANE = 240


def g4_decode(g, idreg, sTB, sNB, sT0):
    g.e(f"s_and_b32 s{sT0}, s{idreg}, 7")
    g.e(f"s_lshr_b32 s{sNB}, s{idreg}, 3")
    g.e(f"s_and_b32 s{sTB}, s{sNB}, 1")
    g.e(f"s_lshr_b32 s{sNB}, s{sNB}, 1")
    g.e(f"s_lshl_b32 s{sT0}, s{sT0}, 1")
    g.e(f"s_add_u32 s{sTB}, s{sTB}, s{sT0}")


def g4_preload(g, idreg=2):
    S_WO = 12
    sWV, sTB, sNB, sT0, sT1 = 24, 25, 26, 27, 28
    T = G4_T
    g.e(f"s_load_dwordx2 s[40:41], s[0:1], {KA['wo']}")
    g.e(f"s_load_dwordx2 s[42:43], s[0:1], {KA['out']}")
    g.e(f"s_load_dwordx2 s[44:45], s[0:1], {KA['ws']}")
    g4_decode(g, idreg, sTB, sNB, sT0)
    g.e(f"v_lshrrev_b32 v{T}, 3, v{G4_LANE}")
    g.e(f"v_mul_u32_u24 v{T}, 1280, v{T}")
    g.e(f"v_lshrrev_b32 v{T+1}, 2, v{G4_LANE}")
    g.e(f"v_and_b32 v{T+1}, 4, v{T+1}")
    g.e(f"v_xor_b32 v{T+1}, v{T+1}, v{G4_LANE}")
    g.e(f"v_and_b32 v{T+1}, 7, v{T+1}")
    g.e(f"v_lshl_add_u32 v{T}, v{T+1}, 4, v{T}")
    for i in range(1, 4):
        g.e(f"v_add_u32 v{T+i}, {i*(8*1280-1024)}, v{T}")
    g.e(f"s_mul_i32 s{sT0}, s{sWV}, {160*1280}")
    g.e(f"s_lshl_b32 s{sT1}, s{sNB}, 7")
    g.e(f"s_add_u32 s{sT0}, s{sT0}, s{sT1}")
    g.e(f"s_mul_i32 s{sT1}, s{sWV}, 20480")
    g.e("s_waitcnt lgkmcnt(0)")
    srd(g, S_WO, 40, 640 * 1280)
    for gi in range(5):
        g.e(f"s_add_u32 m0, s{sT1}, {gi*4096}")
        g.e("s_nop 0")
        for i in range(4):
            g.e(f"buffer_load_dwordx4 v{T+i}, s[{S_WO}:{S_WO+3}], s{sT0} offen offset:{1024*i} lds")
        g.e(f"s_add_u32 s{sT0}, s{sT0}, {32*1280}")


def g4_main(g, ld_sc=""):
    S_WS, S_OUT = 8, 16
    sWV, sTB, sNB, sT0, sT1 = 24, 25, 26, 27, 28
    T = G4_T
    L = G4_LANE
    srd(g, S_WS, 44, WS_USED)
    srd(g, S_OUT, 42, 2048 * 5120)
    g.e(f"s_lshl_b32 s{sT0}, s{sTB}, 2")
    g.e(f"s_add_u32 s{sT0}, s{sT0}, s{sWV}")
    g.e(f"s_mul_i32 s{sT1}, s{sT0}, {O_TT}")
    g.e(f"s_add_u32 s{sT1}, s{sT1}, {OF}")
    g.e(f"v_lshlrev_b32 v{T+4}, 4, v{L}")
    for gi in range(10):
        for i in range(4):
            s = 4 * gi + i
            g.e(f"buffer_load_dwordx4 {vr(G4_A+4*s,4)}, v{T+4}, s[{S_WS}:{S_WS+3}], s{sT1} offen offset:{1024*i} {ld_sc}")
        g.e(f"s_add_u32 s{sT1}, s{sT1}, 4096")
    g.e(f"v_bfe_u32 v{T+5}, v{L}, 2, 2")
    g.e(f"v_lshrrev_b32 v{T+6}, 5, v{L}")
    g.e(f"v_lshl_add_u32 v{T+6}, v{T+6}, 3, v{T+5}")
    g.e(f"v_lshlrev_b32 v{T+6}, 7, v{T+6}")
    g.e(f"v_lshrrev_b32 v{T+5}, 1, v{T+5}")
    g.e(f"v_lshl_add_u32 v{T+6}, v{T+5}, 6, v{T+6}")
    g.e(f"v_and_b32 v{T+5}, 3, v{L}")
    g.e(f"v_bfe_u32 v{T+7}, v{L}, 4, 1")
    g.e(f"v_lshl_add_u32 v{T+5}, v{T+7}, 2, v{T+5}")
    g.e(f"v_lshl_add_u32 v{T+8}, v{T+5}, 3, v{T+6}")
    g.e(f"v_xor_b32 v{T+9}, 64, v{T+8}")
    g.e(f"v_add_u32 v{T+10}, 40960, v{T+8}")
    g.e(f"v_add_u32 v{T+11}, 40960, v{T+9}")
    g.e("s_waitcnt vmcnt(40)")
    g.e("s_barrier")

    def reads(s2, st):
        out = []
        for u in range(2):
            s = 2 * s2 + u
            for b in range(2):
                for j in range(2):
                    off = 2048 * s + 512 * j
                    a = T + 8 + b
                    if s >= 20:
                        off -= 40960
                        a += 2
                    out.append(f"ds_read_b64_tr_b16 {vr(G4_B[st]+8*u+4*b+2*j,2)}, v{a} offset:{off}")
        return out

    g.e("\n".join(reads(0, 0)))
    for s2 in range(20):
        st = s2 & 1
        nxt = reads(s2 + 1, 1 - st) if s2 < 19 else []
        M = []
        for u in range(2):
            s = 2 * s2 + u
            for b in range(2):
                M.append(mfma16(G4_ACC + 16 * b, G4_A + 4 * s, G4_B[st] + 8 * u + 4 * b, "0" if s == 0 else None))
        g.e(f"s_waitcnt vmcnt({38 - 2*s2}) lgkmcnt(0)")
        fill = [nxt[0:3], nxt[3:6], nxt[6:8], []]
        g.e("\n".join(interleave(M, fill)))
    g.e(f"v_lshrrev_b32 v{T}, 5, v{L}")
    g.e(f"v_mul_u32_u24 v{T}, {4*5120}, v{T}")
    g.e(f"v_and_b32 v{T+1}, 31, v{L}")
    g.e(f"v_lshl_add_u32 v{T}, v{T+1}, 2, v{T}")
    for i in range(1, 4):
        g.e(f"v_add_u32 v{T+i}, {5120*i}, v{T}")
    g.e(f"s_mul_i32 s{sT0}, s{sT0}, {32*5120}")
    g.e(f"s_lshl_b32 s{sT1}, s{sNB}, 8")
    g.e(f"s_add_u32 s{sT0}, s{sT0}, s{sT1}")
    g.e(f"s_add_u32 s{sT0}, s{sT0}, 2560")
    g.e("s_nop 4")
    for j in range(4):
        for b in range(2):
            for i in range(4):
                g.e(f"buffer_store_dword v{G4_ACC+16*b+4*j+i}, v{T+i}, s[{S_OUT}:{S_OUT+3}], s{sT0} offen offset:{128*b}")
        if j < 3:
            g.e(f"s_add_u32 s{sT0}, s{sT0}, {8*5120}")
```

```python
from common import *

SLOT = 16384
NSLOT = 5


class Chunk:
    def __init__(self, ndma, dma, reads):
        self.ndma = ndma if callable(ndma) else (lambda stg: ndma)
        self.dma = dma
        self.reads = reads


def gemm_core(g, nst, chA, chB, mfmas, first_pos=(0, 0)):
    nch = 2 * nst
    ch = lambda c: chA if c % 2 == 0 else chB
    issued = []

    def issue(c):
        issued.append(c)
        return ch(c).dma(c // 2, c % NSLOT)

    def waitfor(c):
        n = sum(ch(x).ndma(x // 2) for x in issued if x > c)
        return n

    for c in range(min(NSLOT, nch)):
        g.e("\n".join(issue(c)))
    g.e(f"s_waitcnt vmcnt({waitfor(0)})")
    g.e("s_barrier")
    g.e("\n".join(chA.reads(0, 0, 0)))
    g.e(f"s_waitcnt vmcnt({waitfor(1)}) lgkmcnt(0)")
    g.e("s_barrier")
    rd = chB.reads(0, 1, 0)
    g.e("\n".join(rd))
    if 5 < nch:
        g.e("\n".join(issue(5)))
    for s in range(nst):
        M = mfmas(s, s & 1)
        h = len(M) // 2
        for half in range(2):
            c = 2 * s + 2 + half
            Mh = M[:h] if half == 0 else M[h:]
            if c < nch:
                g.e(f"s_waitcnt vmcnt({waitfor(c)}) lgkmcnt(0)")
                g.e("s_barrier")
                rd = ch(c).reads(c // 2, c % NSLOT, (s + 1) & 1)
                dm = issue(c + 4) if c + 4 < nch else []
                n = len(Mh)
                fill = [[] for _ in range(n)]
                per = -(-len(rd) // max(1, n - 2))
                k = 0
                for i in range(n):
                    fill[i] += rd[k:k + per]
                    k += per
                if dm:
                    fill[0] = [dm[0]] + fill[0]
                    rest = dm[1:]
                    for j, ins in enumerate(rest):
                        fill[min(n - 1, 1 + j * (n - 1) // len(rest))].append(ins)
                g.e("\n".join(interleave(Mh, fill)))
            else:
                if half == 0:
                    g.e("s_waitcnt lgkmcnt(0)")
                g.e("\n".join(Mh))


def lds_off(slot, extra):
    o = slot * SLOT + extra
    if slot == 4:
        return True, o - 4 * SLOT
    return False, o


def direct_dma_voff(g, dst, lane, tmp, tmp2, pitch, nins, wave_rows_s):
    g.e(f"v_lshrrev_b32 v{tmp}, 3, v{lane}")
    g.e(f"v_mul_u32_u24 v{tmp}, {pitch}, v{tmp}")
    g.e(f"v_add_u32 v{tmp}, s{wave_rows_s}, v{tmp}")
    g.e(f"v_lshrrev_b32 v{tmp2}, 4, v{lane}")
    g.e(f"v_xor_b32 v{tmp2}, v{tmp2}, v{lane}")
    g.e(f"v_and_b32 v{tmp2}, 7, v{tmp2}")
    g.e(f"v_lshlrev_b32 v{tmp2}, 4, v{tmp2}")
    for i in range(nins):
        if i % 2 == 0:
            g.e(f"v_add_u32 v{dst+i}, v{tmp}, v{tmp2}")
        else:
            g.e(f"v_xor_b32 v{dst+i}, 64, v{tmp2}")
            g.e(f"v_add_u32 v{dst+i}, v{tmp}, v{dst+i}")
        if i:
            g.e(f"v_add_u32 v{dst+i}, {i*(8*pitch-1024)}, v{dst+i}")


def direct_rd_addr(g, dst, row_v, hl_v, tmp):
    g.e(f"v_lshrrev_b32 v{tmp}, 1, v{row_v}")
    g.e(f"v_xor_b32 v{tmp}, v{tmp}, v{hl_v}")
    g.e(f"v_and_b32 v{tmp}, 7, v{tmp}")
    g.e(f"v_lshlrev_b32 v{tmp}, 4, v{tmp}")
    g.e(f"v_lshl_add_u32 v{dst}, v{row_v}, 7, v{tmp}")
    for s in range(1, 4):
        g.e(f"v_xor_b32 v{dst+s}, {32*s}, v{dst}")
    for s in range(4):
        g.e(f"v_add_u32 v{dst+4+s}, {4*SLOT}, v{dst+s}")


def direct_reads(addr, slot, dst_fn, tiles):
    out = []
    for s in range(4):
        for ti, toff in enumerate(tiles):
            hi, imm = lds_off(slot, toff)
            out.append(f"ds_read_b128 {vr(dst_fn(ti, s), 4)}, v{addr + s + (4 if hi else 0)} offset:{imm}")
    return out
```

```python
from common import *
from gemm import *
from g3 import f32hex

F_AGG = FLG
F_H = FLG + 0x1000

ACC = 64
FS = [128, 192]
V_XD = 1
V_YD = 5
V_XA = 10
V_YA = 18
V_LANE = 26
V_T = 28
V_P = 48
SPIN_MAX = 100000
LOG2E = 1.4426950408889634


def cmul(g, dr, di, ar, ai, br, bi, t):
    g.e(f"v_mul_f32 v{t}, v{ai}, v{bi}")
    g.e(f"v_fma_f32 v{t}, v{ar}, v{br}, -v{t}")
    g.e(f"v_mul_f32 v{t+1}, v{ar}, v{bi}")
    g.e(f"v_fma_f32 v{di}, v{ai}, v{br}, v{t+1}")
    g.e(f"v_mov_b32 v{dr}, v{t}")


def get_nonce(g, s_dbg_srd, sN, vt, pfx):
    g.e(f"v_mov_b32 v{vt}, 0")
    g.e(f"s_mov_b32 s57, {SPIN_MAX}")
    g.lab(f"{pfx}_nonce")
    g.e(f"buffer_load_dword v{vt+1}, v{vt}, s[{s_dbg_srd}:{s_dbg_srd+3}], 0 offen sc1")
    g.e("s_waitcnt vmcnt(0)")
    g.e(f"v_readfirstlane_b32 s{sN}, v{vt+1}")
    g.e("s_nop 3")
    g.e(f"s_cmp_lg_u32 s{sN}, 0")
    g.e(f"s_cbranch_scc1 {pfx}_nonce_ok")
    g.e("s_sleep 2")
    g.e("s_sub_u32 s57, s57, 1")
    g.e("s_cmp_lg_u32 s57, 0")
    g.e(f"s_cbranch_scc1 {pfx}_nonce")
    g.lab(f"{pfx}_nonce_ok")


def put_nonce(g, vt, sT=56):
    g.e(f"s_load_dwordx2 s[{sT}:{sT+1}], s[0:1], {KA['dbg']}")
    g.e(f"s_memrealtime s[{sT+4}:{sT+5}]")
    g.e("s_waitcnt lgkmcnt(0)")
    g.e(f"s_mov_b32 s{sT+2}, 256")
    g.e(f"s_mov_b32 s{sT+3}, 0x{SRD3:08x}")
    g.e(f"s_or_b32 s{sT+6}, s{sT+4}, 1")
    g.e(f"v_mov_b32 v{vt}, 0")
    g.e(f"v_mov_b32 v{vt+1}, s{sT+6}")
    g.e(f"buffer_store_dword v{vt+1}, v{vt}, s[{sT}:{sT+3}], 0 offen sc1")


def poll_flags(g, srd_ws, voff, sN, vt, pfx, need_v=None):
    g.e(f"s_mov_b32 s57, {SPIN_MAX}")
    g.lab(f"{pfx}_poll")
    g.e(f"buffer_load_dword v{vt}, v{voff}, s[{srd_ws}:{srd_ws+3}], 0 offen sc1")
    g.e("s_waitcnt vmcnt(0)")
    g.e(f"v_cmp_ne_u32 vcc, s{sN}, v{vt}")
    g.e("s_and_b64 vcc, vcc, s[58:59]")
    g.e(f"s_cbranch_vccz {pfx}_poll_ok")
    g.e("s_sleep 4")
    g.e("s_sub_u32 s57, s57, 1")
    g.e("s_cmp_lg_u32 s57, 0")
    g.e(f"s_cbranch_scc1 {pfx}_poll")
    g.lab(f"{pfx}_poll_ok")


def ssm(g, idreg=2, pfx="sm"):
    S_X, S_Y, S_WS, S_DBG = 8, 12, 16, 20
    sWV, sC, sCB, sXO, sXB, sXE, sYO, sYB, sYE, sM0, sT0, sT1, sN, sWT, sWC = range(24, 39)
    L, T = V_LANE, V_T
    g.e(f"s_load_dwordx2 s[40:41], s[0:1], {KA['A_x']}")
    g.e(f"s_load_dwordx4 s[44:47], s[0:1], {KA['B_re']}")
    g.e(f"s_load_dwordx4 s[48:51], s[0:1], {KA['Lre']}")
    g.e(f"s_load_dwordx4 s[52:55], s[0:1], {KA['log_dt']}")
    g.e(f"s_load_dwordx4 s[60:63], s[0:1], {KA['dbg']}")
    g.e(f"v_lshrrev_b32 v{T}, 6, v0")
    g.e(f"v_and_b32 v{L}, 63, v0")
    g.e(f"v_readfirstlane_b32 s{sWV}, v{T}")
    g.e(f"s_and_b32 s{sT0}, s{idreg}, 7")
    g.e(f"s_lshr_b32 s{sCB}, s{idreg}, 3")
    g.e(f"s_and_b32 s{sC}, s{sCB}, 1")
    g.e(f"s_lshr_b32 s{sCB}, s{sCB}, 1")
    g.e(f"s_lshl_b32 s{sT0}, s{sT0}, 1")
    g.e(f"s_add_u32 s{sC}, s{sC}, s{sT0}")
    g.e(f"s_lshr_b32 s{sWT}, s{sWV}, 1")
    g.e(f"s_and_b32 s{sWC}, s{sWV}, 1")
    g.e(f"s_and_b32 s{sT1}, s{sC}, 1")
    g.e(f"s_mul_i32 s{sT1}, s{sT1}, 5")
    g.e(f"s_add_u32 s{sT1}, s{sT1}, s{sCB}")
    g.e(f"s_cmp_ge_u32 s{sT1}, 10")
    g.e(f"s_cselect_b32 s{sT0}, 10, 0")
    g.e(f"s_sub_u32 s{sT1}, s{sT1}, s{sT0}")
    g.e(f"s_lshl_b32 s{sT1}, s{sT1}, 7")
    g.e(f"s_mul_i32 s{sXB}, s{sC}, {128*1280}")
    g.e(f"s_add_u32 s{sXE}, s{sXB}, 1280")
    g.e(f"s_add_u32 s{sXO}, s{sXB}, s{sT1}")
    g.e(f"s_mul_i32 s{sYB}, s{sCB}, {64*1280}")
    g.e(f"s_add_u32 s{sYE}, s{sYB}, 1280")
    g.e(f"s_add_u32 s{sYO}, s{sYB}, s{sT1}")
    g.e(f"s_lshl_b32 s{sM0}, s{sWV}, 12")
    g.e(f"s_mul_i32 s{sT0}, s{sWV}, {32*1280}")
    direct_dma_voff(g, V_XD, L, T, T + 1, 1280, 4, sT0)
    g.e(f"s_mul_i32 s{sT0}, s{sWC}, {32*1280}")
    direct_dma_voff(g, V_YD, L, T, T + 1, 1280, 4, sT0)
    g.e("s_waitcnt lgkmcnt(0)")
    srd(g, S_X, 40, 2048 * 1280)
    g.e(f"s_cmp_eq_u32 s{sWT}, 0")
    g.e("s_cselect_b32 s42, s44, s46")
    g.e("s_cselect_b32 s43, s45, s47")
    srd(g, S_Y, 42, 640 * 1280)

    def mkdma(vd, S, so, sb, se, n=4, m0=sM0):
        def f(stage, slot):
            o = [f"s_add_u32 m0, s{m0}, {slot*SLOT}\ns_nop 0"]
            for i in range(n):
                o.append(f"buffer_load_dwordx4 v{vd+i}, s[{S}:{S+3}], s{so} offen offset:{1024*i} lds")
            o[-1] += f"\ns_add_u32 s{so}, s{so}, 128\ns_cmp_eq_u32 s{so}, s{se}\ns_cselect_b32 s{so}, s{sb}, s{so}"
            return o
        return f

    g.e(f"v_and_b32 v{T}, 31, v{L}")
    g.e(f"s_lshl_b32 s{sT0}, s{sCB}, 6")
    g.e(f"s_lshl_b32 s{sT1}, s{sWC}, 5")
    g.e(f"s_add_u32 s{sT0}, s{sT0}, s{sT1}")
    g.e(f"v_add_u32 v{V_P+15}, s{sT0}, v{T}")
    g.e(f"v_lshlrev_b32 v{T+1}, 1, v{V_P+15}")
    g.e(f"global_load_ushort v{V_P}, v{T+1}, s[48:49]")
    g.e(f"global_load_ushort v{V_P+1}, v{T+1}, s[50:51]")
    g.e(f"global_load_ushort v{V_P+2}, v{T+1}, s[52:53]")
    g.e(f"global_load_ushort v{V_P+14}, v{T+1}, s[54:55]")
    g.e(f"v_bfe_u32 v{T+1}, v{L}, 2, 1")
    g.e(f"v_lshlrev_b32 v{T+1}, 4, v{T+1}")
    g.e(f"v_and_b32 v{T+2}, 1, v{L}")
    g.e(f"v_lshl_add_u32 v{T+1}, v{T+2}, 3, v{T+1}")
    g.e(f"v_bfe_u32 v{T+2}, v{L}, 3, 2")
    g.e(f"v_lshl_add_u32 v{T+1}, v{T+2}, 1, v{T+1}")
    g.e(f"v_bfe_u32 v{T+2}, v{L}, 1, 1")
    g.e(f"v_add_u32 v{T+1}, v{T+1}, v{T+2}")
    g.e(f"s_lshl_b32 s{sT0}, s{sWT}, 6")
    g.e(f"v_add_u32 v{T+1}, s{sT0}, v{T+1}")
    g.e(f"v_lshrrev_b32 v{T+2}, 5, v{L}")
    direct_rd_addr(g, V_XA, T + 1, T + 2, T + 3)
    g.e(f"v_add_u32 v{T+1}, s{sT1}, v{T}")
    direct_rd_addr(g, V_YA, T + 1, T + 2, T + 3)

    def xreads(stage, slot, st):
        return direct_reads(V_XA, slot, lambda ti, s: FS[st] + 4 * (2 * s + ti), [0, 4096])

    def yreads(stage, slot, st):
        return direct_reads(V_YA, slot, lambda ti, s: FS[st] + 32 + 4 * (2 * s + ti), [0, 8192])

    def mf1(s, st):
        out = []
        for ks in range(4):
            for a in range(2):
                for b in range(2):
                    out.append(mfma16(ACC + 16 * (2 * a + b), FS[st] + 4 * (2 * ks + a), FS[st] + 32 + 4 * (2 * ks + b),
                                      "0" if (s == 0 and ks == 0) else None))
        return out

    gemm_core(g, 10, Chunk(4, mkdma(V_XD, S_X, sXO, sXB, sXE), xreads), Chunk(4, mkdma(V_YD, S_Y, sYO, sYB, sYE), yreads), mf1)
    stamp(g, 1)
    srd(g, S_WS, 62, WS_USED)
    srd(g, S_DBG, 60, 256)
    P = V_P
    LR, LI = P, P + 1
    g.e(f"v_lshlrev_b32 v{LR}, 16, v{P}")
    g.e(f"v_lshlrev_b32 v{LI}, 16, v{P+1}")
    g.e(f"v_lshlrev_b32 v{T}, 16, v{P+2}")
    g.e(f"v_mul_f32 v{T}, {f32hex(LOG2E)}, v{T}")
    g.e(f"v_exp_f32 v{T}, v{T}")
    g.e("s_nop 0")
    g.e(f"v_cvt_pk_bf16_f32 v{T}, v{T}, v{T}")
    g.e(f"v_lshlrev_b32 v{T}, 16, v{T}")
    g.e(f"v_mul_f32 v{T+1}, v{T}, v{LR}")
    g.e(f"v_mul_f32 v{T+2}, v{T}, v{LI}")
    g.e(f"v_mul_f32 v{T+1}, {f32hex(LOG2E)}, v{T+1}")
    g.e(f"v_mul_f32 v{T+2}, 0.15915494, v{T+2}")
    g.e(f"v_exp_f32 v{T+1}, v{T+1}")
    g.e(f"v_fract_f32 v{T+2}, v{T+2}")
    g.e(f"v_cos_f32 v{T+3}, v{T+2}")
    g.e(f"v_sin_f32 v{T+4}, v{T+2}")
    g.e("s_nop 0")
    LAM = P + 2
    g.e(f"v_mul_f32 v{LAM}, v{T+1}, v{T+3}")
    g.e(f"v_mul_f32 v{LAM+1}, v{T+1}, v{T+4}")
    g.e(f"v_mul_f32 v{T}, v{LR}, v{LR}")
    g.e(f"v_fma_f32 v{T}, v{LI}, v{LI}, v{T}")
    g.e(f"v_rcp_f32 v{T}, v{T}")
    g.e(f"v_add_f32 v{T+1}, -1.0, v{LAM}")
    g.e(f"v_mul_f32 v{T+2}, v{T+1}, v{LR}")
    g.e(f"v_fma_f32 v{T+2}, v{LAM+1}, v{LI}, v{T+2}")
    g.e(f"v_mul_f32 v{T+3}, v{T+1}, v{LI}")
    g.e(f"v_fma_f32 v{T+3}, v{LAM+1}, v{LR}, -v{T+3}")
    g.e(f"v_add_f32 v{T}, v{T}, v{T}")
    C2 = P + 4
    g.e(f"v_mul_f32 v{C2}, v{T+2}, v{T}")
    g.e(f"v_mul_f32 v{C2+1}, v{T+3}, v{T}")
    PW = FS[1]
    g.e(f"v_mov_b32 v{PW}, v{LAM}")
    g.e(f"v_mov_b32 v{PW+1}, v{LAM+1}")
    for k in range(1, 8):
        if k % 2 == 1:
            h = (k + 1) // 2 - 1
            cmul(g, PW + 2 * k, PW + 2 * k + 1, PW + 2 * h, PW + 2 * h + 1, PW + 2 * h, PW + 2 * h + 1, T)
        else:
            cmul(g, PW + 2 * k, PW + 2 * k + 1, PW + 2 * (k - 1), PW + 2 * (k - 1) + 1, LAM, LAM + 1, T)
    L8 = PW + 14
    L128 = P + 6
    cmul(g, L128, L128 + 1, L8, L8 + 1, L8, L8 + 1, T)
    for _ in range(3):
        cmul(g, L128, L128 + 1, L128, L128 + 1, L128, L128 + 1, T)
    RE = lambda a, k: ACC + 32 * a + 2 * k
    IM = lambda a, k: ACC + 32 * a + 16 + 2 * k
    lo = "op_sel_hi:[0,1]"
    for k in range(8):
        for a in range(2):
            t = T + 2 * a
            g.e(f"v_pk_mul_f32 {vr(t,2)}, {vr(C2,2)}, {vr(IM(a,k),2)} op_sel:[1,0] op_sel_hi:[1,1]")
            g.e(f"v_pk_mul_f32 {vr(IM(a,k),2)}, {vr(C2,2)}, {vr(IM(a,k),2)} op_sel_hi:[0,1]")
            g.e(f"v_pk_fma_f32 {vr(IM(a,k),2)}, {vr(C2,2)}, {vr(RE(a,k),2)}, {vr(IM(a,k),2)} op_sel:[1,0,0] op_sel_hi:[1,1,1]")
            g.e(f"v_pk_fma_f32 {vr(RE(a,k),2)}, {vr(C2,2)}, {vr(RE(a,k),2)}, {vr(t,2)} op_sel_hi:[0,1,1] neg_lo:[0,0,1] neg_hi:[0,0,1]")
    for k in range(1, 8):
        for a in range(2):
            g.e(f"v_pk_fma_f32 {vr(RE(a,k),2)}, {vr(LAM,2)}, {vr(RE(a,k-1),2)}, {vr(RE(a,k),2)} op_sel_hi:[0,1,1]")
            g.e(f"v_pk_fma_f32 {vr(IM(a,k),2)}, {vr(LAM,2)}, {vr(IM(a,k-1),2)}, {vr(IM(a,k),2)} op_sel_hi:[0,1,1]")
        for a in range(2):
            g.e(f"v_pk_fma_f32 {vr(RE(a,k),2)}, {vr(LAM,2)}, {vr(IM(a,k-1),2)}, {vr(RE(a,k),2)} op_sel:[1,0,0] op_sel_hi:[1,1,1] neg_lo:[1,0,0] neg_hi:[1,0,0]")
            g.e(f"v_pk_fma_f32 {vr(IM(a,k),2)}, {vr(LAM,2)}, {vr(RE(a,k-1),2)}, {vr(IM(a,k),2)} op_sel:[1,0,0] op_sel_hi:[1,1,1]")
    EA = T + 4
    g.e(f"v_lshrrev_b32 v{T}, 5, v{L}")
    g.e(f"s_lshl_b32 s{sT0}, s{sWT}, 2")
    g.e(f"v_add_u32 v{T}, s{sT0}, v{T}")
    g.e(f"v_and_b32 v{T+1}, 63, v{V_P+15}")
    g.e(f"v_lshlrev_b32 v{T+1}, 3, v{T+1}")
    g.e(f"v_lshl_add_u32 v{EA}, v{T}, 9, v{T+1}")
    g.e("s_barrier")
    for a in range(2):
        g.e(f"ds_write_b64 v{EA}, {vr(RE(a,7),2)} offset:{1024*a}")
        g.e(f"ds_write_b64 v{EA}, {vr(IM(a,7),2)} offset:{4096+1024*a}")
    g.e("s_waitcnt lgkmcnt(0)")
    g.e("s_barrier")
    g.e(f"s_cmp_lg_u32 s{sWT}, 0")
    g.e(f"s_cbranch_scc1 {pfx}_wait2")
    ER, EI = FS[0], FS[0] + 16
    for sp in range(8):
        g.e(f"ds_read_b64 {vr(ER+2*sp,2)}, v{T+1} offset:{512*sp}")
        g.e(f"ds_read_b64 {vr(EI+2*sp,2)}, v{T+1} offset:{4096+512*sp}")
    get_nonce(g, S_DBG, sN, T + 6, pfx)
    g.e("s_waitcnt lgkmcnt(0)")
    XR, XI = T + 6, T + 7
    g.e(f"v_mov_b32 v{XR}, v{ER}")
    g.e(f"v_mov_b32 v{XI}, v{EI}")

    def horner(xr, xi, lr, li, er, ei, t):
        g.e(f"v_fma_f32 v{t}, v{lr}, v{xr}, v{er}")
        g.e(f"v_fma_f32 v{t+1}, v{lr}, v{xi}, v{ei}")
        g.e(f"v_fma_f32 v{t}, -v{li}, v{xi}, v{t}")
        g.e(f"v_fma_f32 v{xi}, v{li}, v{xr}, v{t+1}")
        g.e(f"v_mov_b32 v{xr}, v{t}")

    for s in range(1, 16):
        horner(XR, XI, L8, L8 + 1, ER + s, EI + s, T + 8)
    g.e(f"v_lshlrev_b32 v{T+2}, 3, v{V_P+15}")
    g.e(f"s_mul_i32 s{sT0}, s{sC}, 5120")
    g.e(f"s_add_u32 s{sT0}, s{sT0}, {AGG}")
    g.e(f"buffer_store_dwordx2 {vr(XR,2)}, v{T+2}, s[{S_WS}:{S_WS+3}], s{sT0} offen sc1")
    g.e(f"s_lshl_b32 s{sT0}, s{sCB}, 1")
    g.e(f"s_add_u32 s{sT0}, s{sT0}, s{sWC}")
    g.e(f"s_lshl_b32 s{sT0}, s{sT0}, 7")
    g.e(f"s_add_u32 s{sT0}, s{sT0}, {F_AGG}")
    g.e(f"s_lshl_b32 s{sT1}, s{sC}, 2")
    g.e(f"s_add_u32 s{sT1}, s{sT1}, s{sT0}")
    g.e(f"v_mov_b32 v{T+8}, s{sT1}")
    g.e(f"v_mov_b32 v{T+9}, s{sN}")
    g.e("s_waitcnt vmcnt(0)")
    g.e(f"buffer_store_dword v{T+9}, v{T+8}, s[{S_WS}:{S_WS+3}], 0 offen sc1")
    g.e(f"v_and_b32 v{T+8}, 15, v{L}")
    g.e(f"v_cmp_gt_u32 s[58:59], s{sC}, v{T+8}")
    g.e(f"v_lshlrev_b32 v{T+8}, 2, v{T+8}")
    g.e(f"v_add_u32 v{T+8}, s{sT0}, v{T+8}")
    poll_flags(g, S_WS, T + 8, sN, T + 9, pfx + "a")
    AG = FS[0] + 32
    for r in range(30):
        g.e(f"v_mov_b32 v{AG+r}, 0")
    g.e(f"s_mul_i32 s{sT1}, s{sC}, 5120")
    g.e(f"s_add_u32 s{sT1}, s{sT1}, {AGG}")
    for j in range(1, 16):
        g.e(f"s_cmp_lt_u32 s{sC}, {j}")
        g.e(f"s_cbranch_scc1 {pfx}_lb_done")
        g.e(f"s_sub_u32 s{sT1}, s{sT1}, 5120")
        g.e(f"buffer_load_dwordx2 {vr(AG+2*(15-j),2)}, v{T+2}, s[{S_WS}:{S_WS+3}], s{sT1} offen sc1")
    g.lab(f"{pfx}_lb_done")
    g.e("s_waitcnt vmcnt(0)")
    g.e(f"v_mov_b32 v{XR}, v{AG}")
    g.e(f"v_mov_b32 v{XI}, v{AG+1}")
    for j in range(1, 15):
        horner(XR, XI, L128, L128 + 1, AG + 2 * j, AG + 2 * j + 1, T + 8)
    WR, WI = FS[0] + 32, FS[0] + 48
    g.e(f"v_mov_b32 v{WR}, v{XR}")
    g.e(f"v_mov_b32 v{WI}, v{XI}")
    for s in range(15):
        g.e(f"v_fma_f32 v{WR+s+1}, v{L8}, v{WR+s}, v{ER+s}")
        g.e(f"v_fma_f32 v{WI+s+1}, v{L8}, v{WI+s}, v{EI+s}")
        g.e(f"v_fma_f32 v{WR+s+1}, -v{L8+1}, v{WI+s}, v{WR+s+1}")
        g.e(f"v_fma_f32 v{WI+s+1}, v{L8+1}, v{WR+s}, v{WI+s+1}")
    for sp in range(8):
        g.e(f"ds_write_b64 v{T+1}, {vr(WR+2*sp,2)} offset:{8192+512*sp}")
        g.e(f"ds_write_b64 v{T+1}, {vr(WI+2*sp,2)} offset:{12288+512*sp}")
    g.e("s_waitcnt lgkmcnt(0)")
    g.lab(f"{pfx}_wait2")
    g.e("s_barrier")
    stamp(g, 2)
    HR = lambda a: T + 8 + 4 * a
    HI = lambda a: T + 10 + 4 * a
    for a in range(2):
        g.e(f"ds_read_b64 {vr(HR(a),2)}, v{EA} offset:{8192+1024*a}")
        g.e(f"ds_read_b64 {vr(HI(a),2)}, v{EA} offset:{12288+1024*a}")
    g.e(f"v_lshrrev_b32 v{T}, 2, v{V_P+15}")
    g.e(f"v_lshlrev_b32 v{T}, 8, v{T}")
    g.e(f"v_and_b32 v{T+1}, 3, v{V_P+15}")
    g.e(f"v_lshl_add_u32 v{T}, v{T+1}, 4, v{T}")
    g.e(f"v_lshrrev_b32 v{T+1}, 5, v{L}")
    g.e(f"v_lshl_add_u32 v{T}, v{T+1}, 6, v{T}")
    g.e(f"v_add_u32 v{T+1}, 40960, v{T}")
    g.e(f"s_lshl_b32 s{sT0}, s{sC}, 2")
    g.e(f"s_lshl_b32 s{sT1}, s{sWT}, 1")
    g.e(f"s_add_u32 s{sT0}, s{sT0}, s{sT1}")
    g.e(f"s_mul_i32 s{sT0}, s{sT0}, {H_TT}")
    g.e(f"s_add_u32 s{sT0}, s{sT0}, {HT}")
    g.e(f"s_add_u32 s{sT1}, s{sT0}, {H_TT}")
    g.e("s_waitcnt lgkmcnt(0)")
    for a in range(2):
        for k in range(8):
            pw = vr(PW + 2 * k, 2)
            g.e(f"v_pk_fma_f32 {vr(RE(a,k),2)}, {pw}, {vr(HR(a),2)}, {vr(RE(a,k),2)} op_sel_hi:[0,1,1]")
            g.e(f"v_pk_fma_f32 {vr(IM(a,k),2)}, {pw}, {vr(HI(a),2)}, {vr(IM(a,k),2)} op_sel_hi:[0,1,1]")
        for k in range(8):
            pw = vr(PW + 2 * k, 2)
            g.e(f"v_pk_fma_f32 {vr(RE(a,k),2)}, {pw}, {vr(HI(a),2)}, {vr(RE(a,k),2)} op_sel:[1,0,0] op_sel_hi:[1,1,1] neg_lo:[1,0,0] neg_hi:[1,0,0]")
            g.e(f"v_pk_fma_f32 {vr(IM(a,k),2)}, {pw}, {vr(HR(a),2)}, {vr(IM(a,k),2)} op_sel:[1,0,0] op_sel_hi:[1,1,1]")
        for e in range(2):
            for part in range(2):
                base = RE(a, 0) if part == 0 else IM(a, 0)
                d = FS[0] + 4 * (4 * a + 2 * e + part)
                ng = "-" if part else ""
                for n in range(4):
                    g.e(f"v_cvt_pk_bf16_f32 v{d+n}, {ng}v{base+4*n+e}, {ng}v{base+4*n+2+e}")
                g.e(f"buffer_store_dwordx4 {vr(d,4)}, v{T+part}, s[{S_WS}:{S_WS+3}], s{sT0+a} offen offset:{128*e} sc1")
    g.e("s_waitcnt vmcnt(0)")
    g.e("s_barrier")
    stamp(g, 3)
    g.e(f"s_load_dwordx4 s[44:47], s[0:1], {KA['C_re']}")
    g.e(f"s_load_dwordx2 s[48:49], s[0:1], {KA['out']}")
    g.e(f"s_cmp_lg_u32 s{sWV}, 0")
    g.e(f"s_cbranch_scc1 {pfx}_wait3")
    g.e(f"s_lshl_b32 s{sT0}, s{sC}, 7")
    g.e(f"s_add_u32 s{sT0}, s{sT0}, {F_H}")
    g.e(f"s_lshl_b32 s{sT1}, s{sCB}, 2")
    g.e(f"s_add_u32 s{sT1}, s{sT1}, s{sT0}")
    g.e(f"v_mov_b32 v{T+8}, s{sT1}")
    g.e(f"v_mov_b32 v{T+9}, s{sN}")
    g.e(f"buffer_store_dword v{T+9}, v{T+8}, s[{S_WS}:{S_WS+3}], 0 offen sc1")
    g.e(f"v_and_b32 v{T+8}, 15, v{L}")
    g.e(f"v_cmp_gt_u32 s[58:59], 10, v{T+8}")
    g.e(f"v_lshlrev_b32 v{T+8}, 2, v{T+8}")
    g.e(f"v_add_u32 v{T+8}, s{sT0}, v{T+8}")
    poll_flags(g, S_WS, T + 8, sN, T + 9, pfx + "h")
    g.e("buffer_inv sc1")
    g.e("s_waitcnt vmcnt(0)")
    g.lab(f"{pfx}_wait3")
    V_HD = 9
    S_CR, S_CI = 12, 20
    sHO, sCO, sM2 = sXO, sYO, sYB
    g.e(f"v_lshlrev_b32 v{V_HD}, 4, v{L}")
    g.e(f"s_lshl_b32 s{sT0}, s{sC}, 2")
    g.e(f"s_add_u32 s{sT0}, s{sT0}, s{sWV}")
    g.e(f"s_mul_i32 s{sHO}, s{sT0}, {H_TT}")
    g.e(f"s_add_u32 s{sHO}, s{sHO}, {HT}")
    g.e(f"s_mul_i32 s{sCO}, s{sCB}, {64*1280}")
    g.e(f"s_lshl_b32 s{sM2}, s{sWV}, 11")
    g.e(f"s_lshl_b32 s{sT0}, s{sCB}, 7")
    g.e(f"s_add_u32 s{sXB}, s{sXB}, s{sT0}")
    g.e(f"s_mul_i32 s{sT0}, s{sWV}, {16*1280}")
    direct_dma_voff(g, V_YD, L, T, T + 1, 1280, 2, sT0)
    g.e(f"v_and_b32 v{T}, 31, v{L}")
    g.e(f"s_lshl_b32 s{sT0}, s{sWT}, 6")
    g.e(f"v_add_u32 v{T+1}, s{sT0}, v{T}")
    g.e(f"v_lshrrev_b32 v{T+2}, 5, v{L}")
    direct_rd_addr(g, V_XA, T + 1, T + 2, T + 3)
    V_HA = 7
    g.e(f"v_lshlrev_b32 v{T+1}, 9, v{T+2}")
    g.e(f"v_bfe_u32 v{T+3}, v{L}, 1, 1")
    g.e(f"v_lshl_add_u32 v{T+1}, v{T+3}, 7, v{T+1}")
    g.e(f"v_bfe_u32 v{T+3}, v{L}, 4, 1")
    g.e(f"v_lshl_add_u32 v{T+1}, v{T+3}, 6, v{T+1}")
    g.e(f"v_bfe_u32 v{T+3}, v{L}, 2, 2")
    g.e(f"v_lshl_add_u32 v{T+1}, v{T+3}, 4, v{T+1}")
    g.e(f"v_and_b32 v{T+3}, 1, v{L}")
    g.e(f"v_lshl_add_u32 v{T+1}, v{T+3}, 3, v{T+1}")
    g.e(f"s_lshl_b32 s{sT0}, s{sWT}, 13")
    g.e(f"v_add_u32 v{V_HA}, s{sT0}, v{T+1}")
    g.e(f"v_add_u32 v{V_HA+1}, {4*SLOT}, v{V_HA}")
    DG = 48 - 16
    DG = ACC + 32
    g.e(f"v_and_b32 v{T+1}, 63, v{V_P+15}")
    g.e(f"v_and_b32 v{T+3}, 1, v{T+1}")
    g.e(f"v_lshlrev_b32 v{T+3}, 4, v{T+3}")
    g.e(f"v_lshlrev_b32 v{T+3}, v{T+3}, v{V_P+14}")
    g.e(f"v_lshrrev_b32 v{T+1}, 1, v{T+1}")
    g.e(f"v_lshlrev_b32 v{T+2}, 2, v{T+2}")
    g.e(f"v_sub_u32 v{T+1}, v{T+1}, v{T+2}")
    for s in range(4):
        for q in range(4):
            g.e(f"v_cmp_eq_u32 vcc, {8*s+q}, v{T+1}")
            g.e("s_nop 1")
            g.e(f"v_cndmask_b32 v{DG+4*s+q}, 0, v{T+3}, vcc")
    g.e("s_waitcnt lgkmcnt(0)")
    srd(g, S_CR, 44, 640 * 1280)
    srd(g, S_CI, 46, 640 * 1280)
    g.e("s_barrier")

    def hdma(stage, slot):
        o = [f"s_add_u32 m0, s{sM0}, {slot*SLOT}\ns_nop 0"]
        if stage == 20:
            for i in range(4):
                o.append(f"buffer_load_dwordx4 v{V_XD+i}, s[{S_X}:{S_X+3}], s{sXB} offen offset:{1024*i} lds")
            return o
        for i in range(4):
            o.append(f"buffer_load_dwordx4 v{V_HD}, s[{S_WS}:{S_WS+3}], s{sHO} offen offset:{1024*i} sc1 lds")
        o[-1] += f"\ns_add_u32 s{sHO}, s{sHO}, 4096"
        return o

    def cdma(stage, slot):
        if stage == 20:
            return []
        S = S_CR if stage < 10 else S_CI
        o = [f"s_add_u32 m0, s{sM2}, {slot*SLOT}\ns_nop 0"]
        for i in range(2):
            o.append(f"buffer_load_dwordx4 v{V_YD+i}, s[{S}:{S+3}], s{sCO} offen offset:{1024*i} lds")
        o[-1] += f"\ns_add_u32 s{sCO}, s{sCO}, {128 if stage != 9 else 128 - 1280}"
        return o

    def hreads(stage, slot, st):
        if stage == 20:
            return xreads(stage, slot, st)
        out = []
        for s in range(4):
            for a in range(2):
                for j in range(2):
                    hi, imm = lds_off(slot, 4096 * a + 1024 * s + 256 * j)
                    out.append(f"ds_read_b64_tr_b16 {vr(FS[st]+4*(2*s+a)+2*j,2)}, v{V_HA+(1 if hi else 0)} offset:{imm}")
        return out

    def creads(stage, slot, st):
        if stage == 20:
            return []
        return direct_reads(V_YA, slot, lambda ti, s: FS[st] + 32 + 4 * s, [0])

    def mf2(s, st):
        out = []
        for ks in range(4):
            for a in range(2):
                B = FS[st] + 32 + 4 * ks if s < 20 else DG + 4 * ks
                out.append(mfma16(ACC + 16 * a, FS[st] + 4 * (2 * ks + a), B, "0" if (s == 0 and ks == 0) else None))
        return out

    chH = Chunk(lambda stg: 4, hdma, hreads)
    chC = Chunk(lambda stg: 2 if stg < 20 else 0, cdma, creads)
    gemm_core(g, 21, chH, chC, mf2)
    stamp(g, 4)
    S_OUT = 12
    srd(g, S_OUT, 48, 2048 * 5120)
    g.e(f"v_lshrrev_b32 v{T}, 5, v{L}")
    g.e(f"v_mul_u32_u24 v{T}, {4*5120}, v{T}")
    g.e(f"v_lshl_add_u32 v{T}, v{V_P+15}, 2, v{T}")
    for i in range(1, 4):
        g.e(f"v_add_u32 v{T+i}, {5120*i}, v{T}")
    g.e(f"s_lshl_b32 s{sT0}, s{sC}, 1")
    g.e(f"s_add_u32 s{sT0}, s{sT0}, s{sWT}")
    g.e(f"s_mul_i32 s{sT0}, s{sT0}, {64*5120}")
    g.e("s_nop 4")
    for a in range(2):
        for j in range(4):
            for i in range(4):
                g.e(f"buffer_store_dword v{ACC+16*a+4*j+i}, v{T+i}, s[{S_OUT}:{S_OUT+3}], s{sT0} offen")
            g.e(f"s_add_u32 s{sT0}, s{sT0}, {8*5120}")
```

```python
import sys
import common
if '--stamps' in sys.argv: common.STAMPS = True; sys.argv.remove('--stamps')
from common import *
from g3 import g3
from attn import attn
from g4 import *
from ssm import *

VAR = tuple(x[2:] for x in sys.argv if x.startswith('-v'))
sys.argv = [x for x in sys.argv if not x.startswith('-v')]
HDR = open("cdna_kernels/" + NAME + ".s.ref").read().split("; Override launch")[0]


def code_prefetch(g, lab_start, lab_end, vtmp=250):
    pass


def kstart(g, name):
    g.raw(f".globl {name}")
    g.raw(".p2align 8")
    g.raw(f".type {name},@function")
    g.lab(name)


def build():
    g = Asm()
    g.raw(HDR.rstrip())
    g.raw("; @launch kernel=k1_kernel grid=(240,1,1) block=(256,1,1) lds=81920")
    g.raw("; @launch kernel=k2_kernel grid=(416,1,1) block=(256,1,1) lds=81920")
    g.raw("; @launch kernel=k3_kernel grid=(160,1,1) block=(256,1,1) lds=81920")
    g.raw('.amdgcn_target "amdgcn-amd-amdhsa--gfx950"')
    g.raw(".text")
    kstart(g, "k1_kernel")
    g.e("s_cmp_ge_u32 s2, 240")
    g.e("s_cbranch_scc1 k1_end")
    g3(g)
    g.lab("k1_end")
    g.e("s_endpgm")
    kstart(g, "k2_kernel")
    g.e("s_cmp_ge_u32 s2, 416")
    g.e("s_cbranch_scc1 k2_end")
    g.e("s_cmp_ge_u32 s2, 256")
    g.e("s_cbranch_scc1 k2_a")
    stamp_init(g); stamp_real(g, 14); stamp(g, 0)
    attn(g, var=VAR)
    g.e("s_waitcnt vmcnt(0)")
    stamp(g, 5); stamp_real(g, 15); stamp_flush(g, 24, 250)
    g.e("s_endpgm")
    g.lab("k2_a")
    stamp_init(g); stamp_real(g, 14); stamp(g, 0)
    g.e("s_sub_u32 s3, s2, 256")
    g.e("v_readfirstlane_b32 s4, v0")
    g.e("s_nop 3")
    g.e("s_or_b32 s4, s4, s3")
    g.e("s_cmp_lg_u32 s4, 0")
    g.e("s_cbranch_scc1 k2_a1")
    put_nonce(g, 30)
    g.lab("k2_a1")
    ssm(g, 3)
    g.e("s_waitcnt vmcnt(0)")
    stamp(g, 5); stamp_real(g, 15); stamp_flush(g, 24, 250)
    g.lab("k2_end")
    g.e("s_endpgm")
    kstart(g, "k3_kernel")
    g.e("s_cmp_ge_u32 s2, 160")
    g.e("s_cbranch_scc1 k3_end")
    g.e(f"v_lshrrev_b32 v{G4_T}, 6, v0")
    g.e(f"v_and_b32 v{G4_LANE}, 63, v0")
    g.e(f"v_readfirstlane_b32 s24, v{G4_T}")
    g4_preload(g)
    g4_main(g)
    g.lab("k3_end")
    g.e("s_endpgm")
    g.raw('.section .rodata,"a"')
    for k in ("k1_kernel", "k2_kernel", "k3_kernel"):
        g.raw(".p2align 6")
        g.raw(kernel_tail(k))
    return g.text()


if __name__ == "__main__":
    out = sys.argv[1] if len(sys.argv) > 1 else "v1.s"
    open(out, "w").write(build())
```

```python
NAME = "concat_heads__ssm_conv_s5__mha_block__prompt"

KA = dict(A_x=0, Lre=8, Lim=16, B_re=24, B_im=32, C_re=40, C_im=48, log_dt=56, Dskip=64,
          B_x=72, wqkv=80, wo=88, out=96, dbg=104, ws=112)

QKF = 0x0
QK_TT = 81920
VF = 0x500000
V_ROW = 648 * 16
V_TT = 4 * V_ROW
OF = 0x800000
O_TT = 80 * 512
HT = 0xB00000
H_TT = 81920
AGG = 0x1000000
FLG = 0x1020000
WS_USED = 0x1040000

SRD3 = 0x00020000


class Asm:
    def __init__(self):
        self.L = []

    def e(self, s):
        for ln in s.split("\n"):
            ln = ln.strip()
            if ln:
                self.L.append("    " + ln)

    def lab(self, l):
        self.L.append(l + ":")

    def raw(self, s):
        self.L.append(s)

    def c(self, s):
        self.L.append("    ; " + s)

    def text(self):
        return "\n".join(self.L) + "\n"


def vr(a, n=1):
    return f"v{a}" if n == 1 else f"v[{a}:{a+n-1}]"


def sr(a, n=1):
    return f"s{a}" if n == 1 else f"s[{a}:{a+n-1}]"


def mfma16(d, a, b, c=None):
    cs = vr(d, 16) if c is None else c
    return f"v_mfma_f32_32x32x16_bf16 {vr(d,16)}, {vr(a,4)}, {vr(b,4)}, {cs}"


def srd(g, d, base, nbytes):
    g.e(f"s_mov_b32 s{d}, s{base}")
    g.e(f"s_mov_b32 s{d+1}, s{base+1}")
    g.e(f"s_mov_b32 s{d+2}, {nbytes}")
    g.e(f"s_mov_b32 s{d+3}, 0x{SRD3:08x}")


def interleave(main, fill, positions=None):
    out = []
    for i, m in enumerate(main):
        out.append(m)
        if i < len(fill):
            out += fill[i]
    for j in range(len(main), len(fill)):
        out += fill[j]
    return out


def kernel_tail(name, nvgpr=256, nsgpr=96):
    acc = min(256, (nvgpr + 3) // 4 * 4)
    return f""".amdhsa_kernel {name}
  .amdhsa_next_free_vgpr {nvgpr}
  .amdhsa_next_free_sgpr {nsgpr}
  .amdhsa_accum_offset {acc}
  .amdhsa_group_segment_fixed_size 0
  .amdhsa_kernarg_size 120
  .amdhsa_user_sgpr_count 2
  .amdhsa_user_sgpr_kernarg_segment_ptr 1
  .amdhsa_system_sgpr_workgroup_id_x 1
.end_amdhsa_kernel
"""


STAMPS = False
ST_BASE = 0x2000000


def stamp(g, idx):
    if not STAMPS:
        return
    g.e("s_memtime s[90:91]")
    g.e("s_waitcnt lgkmcnt(0)")
    g.e(f"s_mov_b32 s{70+idx}, s90")


def stamp_real(g, idx):
    if not STAMPS:
        return
    g.e("s_memrealtime s[90:91]")
    g.e("s_waitcnt lgkmcnt(0)")
    g.e(f"s_mov_b32 s{70+idx}, s90")


def stamp_init(g):
    if not STAMPS:
        return
    for i in range(16):
        g.e(f"s_mov_b32 s{70+i}, 0")
    g.e("s_mov_b32 s87, s2")


def stamp_flush(g, wave_s, vt):
    if not STAMPS:
        return
    g.e(f"s_load_dwordx2 s[92:93], s[0:1], {KA['ws']}")
    g.e("s_getreg_b32 s83, hwreg(HW_REG_HW_ID)")
    g.e("s_getreg_b32 s88, hwreg(HW_REG_XCC_ID)")
    g.e("s_lshl_b32 s88, s88, 28")
    g.e("s_and_b32 s83, s83, 0xfffffff")
    g.e("s_or_b32 s83, s83, s88")
    g.e("s_waitcnt lgkmcnt(0)")
    g.e("s_mov_b32 s94, 0x4000000")
    g.e(f"s_mov_b32 s95, 0x{SRD3:08x}")
    g.e("s_lshl_b32 s86, s87, 2")
    g.e(f"s_add_u32 s86, s86, s{wave_s}")
    g.e("s_lshl_b32 s86, s86, 6")
    g.e(f"s_add_u32 s86, s86, {ST_BASE}")
    g.e(f"v_mov_b32 v{vt}, 0")
    for i in range(16):
        g.e(f"v_mov_b32 v{vt+1}, s{70+i}")
        g.e(f"buffer_store_dword v{vt+1}, v{vt}, s[92:95], s86 offen offset:{4*i}")
    g.e("s_waitcnt vmcnt(0)")


DBGST = False
def dbg_stamp(g, slot, launch_idx, cond_sreg=2, cond_val=0, real=True, vt=252):
    if not DBGST:
        return
    lab = f"dbgs_{launch_idx}_{slot}"
    g.e(f"s_cmp_lg_u32 s{cond_sreg}, {cond_val}")
    g.e(f"s_cbranch_scc1 {lab}")
    g.e(f"s_load_dwordx2 s[92:93], s[0:1], {KA['dbg']}")
    g.e(("s_memrealtime" if real else "s_memtime") + " s[96:97]")
    g.e("s_waitcnt lgkmcnt(0)")
    g.e(f"s_add_u32 s92, s92, {512*(2-launch_idx)}")
    g.e("s_addc_u32 s93, s93, 0")
    g.e("s_mov_b32 s94, 256")
    g.e(f"s_mov_b32 s95, 0x{SRD3:08x}")
    g.e(f"v_mov_b32 v{vt}, {4*slot}")
    g.e(f"v_mov_b32 v{vt+1}, s96")
    g.e(f"buffer_store_dword v{vt+1}, v{vt}, s[92:95], 0 offen")
    g.e("s_waitcnt vmcnt(0)")
    g.lab(lab)
```

```python
import sys
import common
if '--dbgst' in sys.argv: common.DBGST = True; sys.argv.remove('--dbgst')
if '--stamps' in sys.argv: common.STAMPS = True; sys.argv.remove('--stamps')
from common import *
from g3 import g3
from attn import attn
from g4 import *
from ssm import *

VAR = tuple(x[2:] for x in sys.argv if x.startswith('-v'))
sys.argv = [x for x in sys.argv if not x.startswith('-v')]
HDR = open("cdna_kernels/" + NAME + ".s.ref").read().split("; Override launch")[0]


def code_prefetch(g, lab_start, lab_end, vtmp=250):
    pass


def kstart(g, name):
    g.raw(f".globl {name}")
    g.raw(".p2align 8")
    g.raw(f".type {name},@function")
    g.lab(name)


def build():
    g = Asm()
    g.raw(HDR.rstrip())
    g.raw("; @launch kernel=k1_kernel grid=(240,1,1) block=(256,1,1) lds=81920")
    g.raw("; @launch kernel=k2_kernel grid=(416,1,1) block=(256,1,1) lds=81920")
    g.raw("; @launch kernel=k3_kernel grid=(160,1,1) block=(256,1,1) lds=81920")
    g.raw('.amdgcn_target "amdgcn-amd-amdhsa--gfx950"')
    g.raw(".text")
    kstart(g, "k1_kernel")
    g.e("s_cmp_ge_u32 s2, 240")
    g.e("s_cbranch_scc1 k1_end")
    dbg_stamp(g, 0, 0, vt=40)
    g3(g)
    g.e('s_waitcnt vmcnt(0)')
    dbg_stamp(g, 1, 0, vt=40)
    g.lab("k1_end")
    g.e("s_endpgm")
    kstart(g, "k2_kernel")
    g.e("s_cmp_ge_u32 s2, 416")
    g.e("s_cbranch_scc1 k2_end")
    g.e("s_cmp_ge_u32 s2, 256")
    g.e("s_cbranch_scc1 k2_a")
    stamp_init(g); stamp_real(g, 14); stamp(g, 0)
    dbg_stamp(g, 2, 1)
    dbg_stamp(g, 8, 1, real=False)
    attn(g, var=VAR)
    g.e('s_waitcnt vmcnt(0)')
    dbg_stamp(g, 3, 1)
    dbg_stamp(g, 9, 1, real=False)
    g.e("s_waitcnt vmcnt(0)")
    stamp(g, 5); stamp_real(g, 15); stamp_flush(g, 24, 250)
    g.e("s_endpgm")
    g.lab("k2_a")
    stamp_init(g); stamp_real(g, 14); stamp(g, 0)
    g.e("s_sub_u32 s3, s2, 256")
    g.e("v_readfirstlane_b32 s4, v0")
    g.e("s_nop 3")
    g.e("s_or_b32 s4, s4, s3")
    g.e("s_cmp_lg_u32 s4, 0")
    g.e("s_cbranch_scc1 k2_a1")
    put_nonce(g, 30)
    g.lab("k2_a1")
    dbg_stamp(g, 4, 1, 3, vt=44)
    ssm(g, 3)
    g.e('s_waitcnt vmcnt(0)')
    dbg_stamp(g, 5, 1, 3)
    g.e("s_waitcnt vmcnt(0)")
    stamp(g, 5); stamp_real(g, 15); stamp_flush(g, 24, 250)
    g.lab("k2_end")
    g.e("s_endpgm")
    kstart(g, "k3_kernel")
    g.e("s_cmp_ge_u32 s2, 160")
    g.e("s_cbranch_scc1 k3_end")
    g.e(f"v_lshrrev_b32 v{G4_T}, 6, v0")
    g.e(f"v_and_b32 v{G4_LANE}, 63, v0")
    g.e(f"v_readfirstlane_b32 s24, v{G4_T}")
    dbg_stamp(g, 6, 2)
    g4_preload(g)
    g4_main(g)
    g.e('s_waitcnt vmcnt(0)')
    dbg_stamp(g, 7, 2)
    g.lab("k3_end")
    g.e("s_endpgm")
    g.raw('.section .rodata,"a"')
    for k in ("k1_kernel", "k2_kernel", "k3_kernel"):
        g.raw(".p2align 6")
        g.raw(kernel_tail(k, nsgpr=102))
    return g.text()


if __name__ == "__main__":
    out = sys.argv[1] if len(sys.argv) > 1 else "v1.s"
    open(out, "w").write(build())
```

```python
from common import *
from sync import *

O_ = 0
SB = [64, 96]
PA, PB = 128, 136
Q16 = 144
QR = 160
K16 = [164, 168, 172, 176]
KR = [180, 182, 184, 186]
VB = [188, 196, 204, 212]
V_K, V_KR, V_V0, V_V1 = 220, 221, 222, 223
V_LANE, V_T = 224, 226
MX = 240
UNROLL = 8


def exp(r):
    return f"v_exp_f32 v{r}, v{r}"


def cvt(d, s):
    return f"v_cvt_pk_bf16_f32 v{d}, v{s}, v{s+1}"


def attn(g, pfx="at", ldsc="sc1", stsc="sc1", qread=None, pf_delay=False, niter=None, markwait=False):
    ld_sc, st_sc, fused = ldsc, stsc, True
    S_WS = 8
    sHP, sQB, sH1, sKH, sI, sKO, sVO, sVN, sT0, sT1, sCNT, sKB = range(25, 37)
    sWV = S_WAVE
    T, L = V_T, V_LANE
    SR = f"s[{S_WS}:{S_WS+3}]"
    qread()
    g.e(f"s_cmp_lg_u32 s{sWV}, 0")
    g.e(f"s_cbranch_scc1 {pfx}_nn")
    get_nonce(g, 20, T, pfx)
    g.e(f"s_getreg_b32 s{S_XCC}, hwreg(HW_REG_XCC_ID, 0, 3)")
    g.e(f"s_or_b32 s{S_XCC}, s{S_XCC}, s{S_NONCE}")
    g.lab(f"{pfx}_nn")
    g.e(f"s_lshl_b32 s{sKB}, s{sHP}, {FP+4}")
    g.e(f"s_lshl_b32 s{sT1}, s{sQB}, {FP}")
    g.e(f"s_add_u32 s{sCNT}, s{sKB}, s{sT1}")
    g.e(f"s_add_u32 s{sT0}, s{sCNT}, {F_G3}")
    g.e("s_waitcnt vmcnt(0)")
    g.e("s_barrier")
    g.e(f"s_cmp_lg_u32 s{sWV}, 0")
    g.e(f"s_cbranch_scc1 {pfx}_nf")
    put_flag(g, S_WS, sT0, T, S_XCC)
    g.lab(f"{pfx}_nf")
    stamp(g, 7)
    lane(g, L)
    g.e(f"s_lshr_b32 s{sH1}, s{sWV}, 1")
    g.e(f"s_and_b32 s{sKH}, s{sWV}, 1")
    g.e(f"s_mul_i32 s{sT0}, s{sHP}, {K_HP}")
    g.e(f"s_mul_i32 s{sT1}, s{sH1}, {3*512}")
    g.e(f"s_add_u32 s{sT1}, s{sT1}, s{sT0}")
    g.e(f"v_lshlrev_b32 v{T}, 4, v{L}")
    g.e(f"v_add_u32 v{V_K}, s{sT1}, v{T}")
    g.e(f"v_and_b32 v{T}, 31, v{L}")
    g.e(f"v_lshlrev_b32 v{T+2}, 4, v{T}")
    g.e(f"s_lshl_b32 s{sT1}, s{sH1}, 3")
    g.e(f"s_add_u32 s{sT0}, s{sT0}, s{sT1}")
    g.e(f"s_add_u32 s{sT0}, s{sT0}, {2*512}")
    g.e(f"v_add_u32 v{V_KR}, s{sT0}, v{T+2}")
    g.e(f"v_lshrrev_b32 v{T+3}, 5, v{L}")
    g.e(f"v_mul_u32_u24 v{T+3}, 384, v{T+3}")
    g.e(f"s_lshl_b32 s{sT0}, s{sHP}, 1")
    g.e(f"s_add_u32 s{sT0}, s{sT0}, s{sH1}")
    g.e(f"s_mul_i32 s{sT0}, s{sT0}, {V_HD}")
    g.e(f"s_add_u32 s{sT0}, s{sT0}, {VF2}")
    g.e(f"v_add3_u32 v{V_V0}, v{T+2}, v{T+3}, s{sT0}")
    g.e(f"v_cmp_lt_u32 vcc, 20, v{T}")
    g.e(f"v_mov_b32 v{T+5}, 0x7f000000")
    g.e(f"s_lshl_b32 s{sI}, s{sQB}, 1")
    g.e(f"v_cndmask_b32 v{V_V0}, v{V_V0}, v{T+5}, vcc")
    g.e(f"s_cmp_lg_u32 s{sWV}, 0")
    g.e(f"s_cbranch_scc1 {pfx}_go")
    g.e(f"v_and_b32 v{T+6}, 15, v{L}")
    g.e(f"v_lshlrev_b32 v{T+6}, {FP}, v{T+6}")
    g.e(f"v_add_u32 v{T+6}, s{sKB}, v{T+6}")
    g.e(f"v_add_u32 v{T+7}, {F_G3}, v{T+6}")
    g.e(f"s_mov_b32 s67, {SPIN_MAX}")
    g.lab(f"{pfx}_poll")
    g.e(f"buffer_load_dword v{T+9}, v{T+7}, {SR}, 0 offen sc1")
    g.e("s_waitcnt vmcnt(0)")
    g.e(f"v_and_b32 v{T+10}, -8, v{T+9}")
    g.e(f"v_cmp_ne_u32 vcc, s{S_NONCE}, v{T+10}")
    g.e("s_nop 4")
    g.e(f"s_cbranch_vccz {pfx}_all")
    g.e("s_sleep 1")
    g.e("s_sub_u32 s67, s67, 1")
    g.e("s_cmp_lg_u32 s67, 0")
    g.e(f"s_cbranch_scc1 {pfx}_poll")
    g.lab(f"{pfx}_all")
    g.e(f"v_cmp_ne_u32 vcc, s{S_XCC}, v{T+9}")
    g.e("s_nop 4")
    g.e(f"s_cbranch_vccz {pfx}_go")
    g.e("buffer_wbl2 sc1")
    g.e("s_waitcnt vmcnt(0)")
    g.e(f"s_add_u32 s{sT0}, s{sCNT}, {F_GG}")
    put_flag(g, S_WS, sT0, T + 9)
    g.e(f"v_add_u32 v{T+7}, {F_GG}, v{T+6}")
    poll_flags(g, S_WS, T + 7, T + 9, pfx + "g", sleep=4, mask=False)
    g.lab(f"{pfx}_go")
    g.e(f"s_lshl_b32 s{sKB}, s{sKH}, 5")
    g.e("s_barrier")
    stamp(g, 8)

    def next_kt():
        return [f"s_add_u32 s{sT0}, s{sI}, s{sKB}",
                f"s_mul_i32 s{sKO}, s{sT0}, {K_KT}",
                f"s_mul_i32 s{sVN}, s{sT0}, {V_KT}",
                f"s_add_u32 s{sI}, s{sI}, 1",
                f"s_and_b32 s{sI}, s{sI}, 31"]

    def ldK(b):
        return [f"buffer_load_dwordx2 {vr(KR[b],2)}, v{V_KR}, {SR}, s{sKO} offen {ld_sc}",
                f"buffer_load_dwordx4 {vr(K16[b],4)}, v{V_K}, {SR}, s{sKO} offen {ld_sc}"]

    def ldV(b, so):
        return [f"buffer_load_dwordx4 {vr(VB[b],4)}, v{V_V0}, {SR}, s{so} offen {ld_sc}",
                f"buffer_load_dwordx4 {vr(VB[b]+4,4)}, v{V_V0}, {SR}, s{so} offen offset:768 {ld_sc}"]

    def qk2b(S, kb, pair):
        return f"v_mfma_f32_32x32x4_2b_bf16 {vr(S,32)}, {vr(KR[kb],2)}, {vr(QR+2*pair,2)}, 0"

    def qk16(S, kb, qt):
        return mfma16(S, K16[kb], Q16 + 4 * qt)

    def pv(qt, vb, m, P):
        return mfma16(O_ + 16 * qt, VB[vb] + 4 * m, P + 4 * m)

    sQ0 = 38
    g.e("\n".join(next_kt()))
    g.e("\n".join(ldK(0)))
    for i in range(3):
        g.e("\n".join(ldV(i, sVN)))
        g.e("\n".join(next_kt()))
        g.e("\n".join(ldK(i + 1)))
    g.e(f"s_mov_b32 s{sVO}, s{sVN}")
    g.e("\n".join(next_kt()))
    g.e(f"s_lshl_b32 s{sQ0}, s{sQB}, 2")
    g.e(f"s_lshl_b32 s{sT1}, s{sKH}, 1")
    g.e(f"s_add_u32 s{sQ0}, s{sQ0}, s{sT1}")
    for r in list(range(SB[1] + 30, SB[1] + 32)) + list(range(PB, PB + 8)) + list(range(VB[3], VB[3] + 8)) + list(range(48, 64)):
        g.e(f"v_mov_b32 v{r}, 0")
    g.e("s_waitcnt vmcnt(13) lgkmcnt(0)")
    g.e(qk2b(SB[0], 0, 0))
    for r in range(0, 24):
        g.e(f"v_mov_b32 v{r}, 0")
    g.e("s_waitcnt vmcnt(12)")
    g.e(qk16(SB[0], 0, 0))
    g.e(qk16(SB[0] + 16, 0, 1))
    g.e(f"s_cmp_lg_u32 s{sWV}, 0")
    g.e(f"s_cbranch_scc1 {pfx}_nm")
    cu_flag_addr(g, sCNT, sT1)
    g.e(f"v_mov_b32 v{T+6}, s{sCNT}")
    g.e(f"v_mov_b32 v{T+7}, s{S_NONCE}")
    g.e("s_waitcnt vmcnt(0)" if markwait else "s_nop 0")
    g.e("s_mov_b64 exec, 1")
    g.e(f"buffer_store_dword v{T+7}, v{T+6}, {SR}, 0 offen")
    g.e("s_mov_b64 exec, -1")
    g.lab(f"{pfx}_nm")
    g.e(f"s_mov_b32 s{sCNT}, {niter or 32 // UNROLL}")
    for r in range(24, 48):
        g.e(f"v_mov_b32 v{r}, 0")

    def period(kt, p):
        S = SB[p]
        Sn = SB[1 - p]
        b = kt & 3
        kb = b if p == 0 else (b + 1) & 3
        pn = 1 - p
        qb_prev = 3 if p == 0 else 1
        vb_prev = (b - 1) & 3 if p == 0 else b
        qa = 2 * p
        pre = {2: [qk2b(Sn, kb, pn)], 9: [pv(qb_prev, vb_prev, 0, PB)], 13: [pv(qb_prev, vb_prev, 1, PB)],
               17: [qk16(Sn, kb, 2 * pn)], 21: [pv(qa, b, 0, PA)], 25: [qk16(Sn + 16, kb, 2 * pn + 1)],
               29: [pv(qa, b, 1, PA)]}
        if p == 0:
            v = ldV((b - 1) & 3, sVO)
            k = ldK(b)
            pre[9].append("s_waitcnt vmcnt(8)")
            pre[13].append(v[0])
            pre[17].append(v[1])
            pre[25].append(k[0])
            pre[29].append(k[1])
        else:
            nk = [f"s_mov_b32 s{sVO}, s{sVN}"] + next_kt()
            for n, ins in zip((2, 9, 13, 17, 21, 25), nk):
                pre[n].append(ins)
            if kt == UNROLL - 1:
                pre[25].append(f"s_sub_u32 s{sCNT}, s{sCNT}, 1")
                pre[29].append(f"s_cmp_lg_u32 s{sCNT}, 0")
        out = []
        for n in range(32):
            out += pre.get(n, [])
            out.append(exp(S + n))
            if n % 2 == 1:
                k = (n - 3) // 2
                if k < 0:
                    out.append(cvt(PB + 7, Sn + 30))
                else:
                    P = PA + k if k < 8 else PB + k - 8
                    out.append(cvt(P, S + 2 * k))
        return out

    stamp(g, 9)
    g.raw(".p2align 6")
    g.lab(f"{pfx}_loop")
    for kt in range(UNROLL):
        for p in range(2):
            g.e("\n".join(period(kt, p)))
    g.e(f"s_cbranch_scc1 {pfx}_loop")
    stamp(g, 10)
    g.e(pv(3, 3, 0, PB))
    g.e(cvt(PB + 7, SB[1] + 30))
    g.e(f"v_lshlrev_b32 v{T}, 4, v{L}")
    g.e(f"s_mul_i32 s{sT0}, s{sWV}, 6144")
    g.e(f"s_add_u32 s{sT0}, s{sT0}, 32768")
    g.e(pv(3, 3, 1, PB))
    g.e(f"v_add_u32 v{T+1}, s{sT0}, v{T}")
    g.e(f"s_xor_b32 s{sT1}, s{sWV}, 1")
    g.e(f"s_mul_i32 s{sT1}, s{sT1}, 6144")
    g.e(f"s_add_u32 s{sT1}, s{sT1}, 32768")
    g.e(f"v_add_u32 v{T+2}, s{sT1}, v{T}")
    for j in range(3):
        g.e(f"ds_write_b128 v{T+1}, {vr(O_+32+4*j,4)} offset:{1024*j}")
    g.e(f"s_mul_i32 s{sT0}, s{sQ0}, {O_TT}")
    g.e(f"s_add_u32 s{sT0}, s{sT0}, {OF}")
    g.e(f"s_add_u32 s{sT1}, s{sT0}, {O_TT}")
    g.e(f"s_mul_i32 s{sI}, s{sHP}, {K_HP - 5*512}")
    g.e(f"v_subrev_u32 v{T+3}, s{sI}, v{V_K}")
    g.e(f"v_subrev_u32 v{T+4}, s{sI}, v{V_KR}")
    g.e(f"v_cmp_le_u32 vcc, 32, v{L}")
    for j in range(3):
        g.e(f"ds_write_b128 v{T+1}, {vr(O_+48+4*j,4)} offset:{1024*(3+j)}")
    g.e(f"v_cndmask_b32 v{T+4}, v{T+4}, v{T+5}, vcc")
    g.e("s_waitcnt lgkmcnt(0)")
    g.e("s_barrier")
    stamp(g, 5)
    for qt in range(2):
        for j in range(3):
            g.e(f"ds_read_b128 {vr(SB[1]+16*qt+4*j,4)}, v{T+2} offset:{1024*(3*qt+j)}")
    g.e(f"v_mov_b32 v{T+6}, 0x207")
    g.e("s_mov_b64 s[40:41], 0")
    for qt in range(2):
        a = O_ + 16 * qt
        b = SB[1] + 16 * qt
        g.e(f"s_waitcnt lgkmcnt({3 - 3*qt})")
        for r in range(0, 12, 2):
            g.e(f"v_pk_add_f32 {vr(a+r,2)}, {vr(a+r,2)}, {vr(b+r,2)}")
        c = SB[0] + 8 * qt
        g.e(f"v_pk_add_f32 {vr(c,2)}, {vr(a,2)}, {vr(a+2,2)}")
        g.e(f"v_pk_add_f32 {vr(c+2,2)}, {vr(a+4,2)}, {vr(a+6,2)}")
        g.e(f"v_pk_add_f32 {vr(c+4,2)}, {vr(a+8,2)}, {vr(a+10,2)}")
        g.e(f"v_cmp_nle_f32 vcc, 0x17800000, v{a+8}")
        g.e("s_or_b32 s41, s41, vcc_hi")
        g.e(f"v_pk_add_f32 {vr(c,2)}, {vr(c,2)}, {vr(c+2,2)}")
        g.e(f"v_cmp_nge_f32 vcc, 0x67800000, v{a+8}")
        g.e("s_or_b32 s41, s41, vcc_hi")
        g.e(f"v_pk_add_f32 {vr(c,2)}, {vr(c,2)}, {vr(c+4,2)}")
        g.e(f"v_add_f32 v{c}, v{c}, v{c+1}")
        g.e(f"v_cmp_class_f32 vcc, v{c}, v{T+6}")
        g.e("s_or_b64 s[40:41], s[40:41], vcc")
    g.e("s_cmp_lg_u64 s[40:41], 0")
    g.e(f"s_cbranch_scc1 {pfx}_slow")
    g.lab(f"{pfx}_fin")
    for qt in range(2):
        a = O_ + 16 * qt
        g.e(f"v_mov_b32 v{a+12}, v{a+8}")
        g.e(f"v_mov_b32 v{a+14}, v{a+8}")
    g.e("s_nop 0")
    for qt in range(2):
        a = O_ + 16 * qt
        g.e(f"v_permlane32_swap_b32 v{a+12}, v{a+14}")
    g.e("s_nop 0")
    for qt in range(2):
        a = O_ + 16 * qt
        g.e(f"v_rcp_f32 v{a+14}, v{a+14}")
    for qt in range(2):
        a = O_ + 16 * qt
        b = SB[1] + 16 * qt
        if qt == 0:
            g.e("s_nop 0")
        for r in range(0, 12, 2):
            g.e(f"v_pk_mul_f32 {vr(a+r,2)}, {vr(a+r,2)}, {vr(a+14,2)} op_sel_hi:[1,0]")
        for q in range(6):
            g.e(cvt(b + q, a + 2 * q))
        g.e(f"buffer_store_dwordx2 {vr(b+4,2)}, v{T+4}, {SR}, s{sT0+qt} offen {st_sc}")
        g.e(f"v_permlane32_swap_b32 v{b}, v{b+2}")
        g.e(f"v_permlane32_swap_b32 v{b+1}, v{b+3}")
        g.e(f"buffer_store_dwordx4 {vr(b,4)}, v{T+3}, {SR}, s{sT0+qt} offen {st_sc}")
    if fused:
        g.e(f"s_lshl_b32 s{sT0}, s{sQB}, {FP+4}")
        g.e(f"s_lshl_b32 s{sT1}, s{sHP}, {FP}")
        g.e(f"s_add_u32 s{sT0}, s{sT0}, s{sT1}")
        g.e(f"s_add_u32 s{sT0}, s{sT0}, {F_O}")
        stamp(g, 6)
        g.e("s_waitcnt vmcnt(0)")
        g.e("s_barrier")
        g.e(f"s_cmp_lg_u32 s{sWV}, 0")
        g.e(f"s_cbranch_scc1 {pfx}_done")
        put_flag(g, S_WS, sT0, T)
    g.e(f"s_branch {pfx}_done")

    g.lab(f"{pfx}_slow")
    g.e("s_waitcnt vmcnt(0)")
    g.e(f"v_mov_b32 v{MX}, 0xff800000")
    g.e(f"v_mov_b32 v{MX+1}, 0xff800000")

    def s_tiles():
        g.e(qk2b(SB[0], 0, 0))
        g.e("s_nop 15")
        g.e("s_nop 3")
        g.e(qk16(SB[0], 0, 0))
        g.e(qk16(SB[0] + 16, 0, 1))
        g.e("s_nop 15")

    g.e(f"s_mov_b32 s{sKO}, 0")
    g.lab(f"{pfx}_s1")
    g.e("\n".join(ldK(0)))
    g.e("s_waitcnt vmcnt(0)")
    s_tiles()
    for t in range(2):
        for r in range(0, 16, 2):
            g.e(f"v_max3_f32 v{MX+t}, v{SB[0]+16*t+r}, v{SB[0]+16*t+r+1}, v{MX+t}")
    g.e(f"s_add_u32 s{sKO}, s{sKO}, {K_KT}")
    g.e(f"s_cmp_lg_u32 s{sKO}, {64*K_KT}")
    g.e(f"s_cbranch_scc1 {pfx}_s1")
    for qt in range(2):
        g.e(f"v_mov_b32 v{MX+4}, v{MX+qt}")
        g.e(f"v_mov_b32 v{MX+5}, v{MX+qt}")
        g.e("s_nop 1")
        g.e(f"v_permlane32_swap_b32 v{MX+4}, v{MX+5}")
        g.e("s_nop 1")
        g.e(f"v_max_f32 v{MX+qt}, v{MX+4}, v{MX+5}")
    for r in range(32):
        g.e(f"v_mov_b32 v{O_+r}, 0")
    g.e(f"s_mov_b32 s{sKO}, 0")
    g.e(f"s_mov_b32 s{sVN}, 0")
    g.lab(f"{pfx}_s2")
    g.e("\n".join(ldK(0)))
    g.e("\n".join(ldV(0, sVN)))
    g.e("s_waitcnt vmcnt(0)")
    s_tiles()
    for t in range(2):
        for r in range(16):
            g.e(f"v_sub_f32 v{SB[0]+16*t+r}, v{SB[0]+16*t+r}, v{MX+t}")
        for r in range(16):
            g.e(exp(SB[0] + 16 * t + r))
        g.e("s_nop 0")
        for k in range(8):
            g.e(cvt(PA + k, SB[0] + 16 * t + 2 * k))
        g.e("s_nop 1")
        g.e(pv(t, 0, 0, PA))
        g.e(pv(t, 0, 1, PA))
    g.e(f"s_add_u32 s{sKO}, s{sKO}, {K_KT}")
    g.e(f"s_add_u32 s{sVN}, s{sVN}, {V_KT}")
    g.e(f"s_cmp_lg_u32 s{sKO}, {64*K_KT}")
    g.e(f"s_cbranch_scc1 {pfx}_s2")
    g.e("s_nop 15")
    g.e(f"s_branch {pfx}_fin")
    g.lab(f"{pfx}_done")
```

```python
NAME = "concat_heads__ssm_conv_s5__mha_block__prompt"

KA = dict(A_x=0, Lre=8, Lim=16, B_re=24, B_im=32, C_re=40, C_im=48, log_dt=56, Dskip=64,
          B_x=72, wqkv=80, wo=88, out=96, dbg=104, ws=112)

QKF = 0x0
QK_TT = 81920
VF = 0x500000
V_ROW = 648 * 16
V_TT = 4 * V_ROW
OF = 0x800000
O_TT = 80 * 512
HT = 0xB00000
H_TT = 81920
AGG = 0x1000000
FLG = 0x1040000
WS_USED = 0x10c0000

SRD3 = 0x00020000


class Asm:
    def __init__(self):
        self.L = []

    def e(self, s):
        for ln in s.split("\n"):
            ln = ln.strip()
            if ln:
                self.L.append("    " + ln)

    def lab(self, l):
        self.L.append(l + ":")

    def raw(self, s):
        self.L.append(s)

    def c(self, s):
        self.L.append("    ; " + s)

    def text(self):
        return "\n".join(self.L) + "\n"


def vr(a, n=1):
    return f"v{a}" if n == 1 else f"v[{a}:{a+n-1}]"


def sr(a, n=1):
    return f"s{a}" if n == 1 else f"s[{a}:{a+n-1}]"


def mfma16(d, a, b, c=None):
    cs = vr(d, 16) if c is None else c
    return f"v_mfma_f32_32x32x16_bf16 {vr(d,16)}, {vr(a,4)}, {vr(b,4)}, {cs}"


def srd(g, d, base, nbytes):
    g.e(f"s_mov_b32 s{d}, s{base}")
    g.e(f"s_mov_b32 s{d+1}, s{base+1}")
    g.e(f"s_mov_b32 s{d+2}, {nbytes}")
    g.e(f"s_mov_b32 s{d+3}, 0x{SRD3:08x}")


def interleave(main, fill, positions=None):
    out = []
    for i, m in enumerate(main):
        out.append(m)
        if i < len(fill):
            out += fill[i]
    for j in range(len(main), len(fill)):
        out += fill[j]
    return out


def kernel_tail(name, nvgpr=256, nsgpr=96):
    acc = min(256, (nvgpr + 3) // 4 * 4)
    return f""".amdhsa_kernel {name}
  .amdhsa_next_free_vgpr {nvgpr}
  .amdhsa_next_free_sgpr {nsgpr}
  .amdhsa_accum_offset {acc}
  .amdhsa_group_segment_fixed_size 0
  .amdhsa_kernarg_size 120
  .amdhsa_user_sgpr_count 2
  .amdhsa_user_sgpr_kernarg_segment_ptr 1
  .amdhsa_system_sgpr_workgroup_id_x 1
.end_amdhsa_kernel
"""


STAMPS = False
ST_BASE = 0x2000000


def stamp(g, idx):
    if not STAMPS:
        return
    g.e("s_memtime s[90:91]")
    g.e("s_waitcnt lgkmcnt(0)")
    g.e(f"s_mov_b32 s{70+idx}, s90")


def stamp_real(g, idx):
    if not STAMPS:
        return
    g.e("s_memrealtime s[90:91]")
    g.e("s_waitcnt lgkmcnt(0)")
    g.e(f"s_mov_b32 s{70+idx}, s90")


def stamp_init(g):
    if not STAMPS:
        return
    for i in range(16):
        g.e(f"s_mov_b32 s{70+i}, 0")
    g.e("s_mov_b32 s87, s2")


def stamp_flush(g, wave_s, vt):
    if not STAMPS:
        return
    g.e(f"s_load_dwordx2 s[92:93], s[0:1], {KA['ws']}")
    g.e("s_getreg_b32 s83, hwreg(HW_REG_HW_ID)")
    g.e("s_getreg_b32 s88, hwreg(HW_REG_XCC_ID)")
    g.e("s_lshl_b32 s88, s88, 28")
    g.e("s_and_b32 s83, s83, 0xfffffff")
    g.e("s_or_b32 s83, s83, s88")
    g.e("s_waitcnt lgkmcnt(0)")
    g.e("s_mov_b32 s94, 0x4000000")
    g.e(f"s_mov_b32 s95, 0x{SRD3:08x}")
    g.e("s_lshl_b32 s86, s87, 2")
    g.e(f"s_add_u32 s86, s86, s{wave_s}")
    g.e("s_lshl_b32 s86, s86, 6")
    g.e(f"s_add_u32 s86, s86, {ST_BASE}")
    g.e(f"v_mov_b32 v{vt}, 0")
    for i in range(16):
        g.e(f"v_mov_b32 v{vt+1}, s{70+i}")
        g.e(f"buffer_store_dword v{vt+1}, v{vt}, s[92:95], s86 offen offset:{4*i}")
    g.e("s_waitcnt vmcnt(0)")


DBGST = False
def dbg_stamp(g, slot, launch_idx, cond_sreg=2, cond_val=0, real=True, vt=252):
    if not DBGST:
        return
    lab = f"dbgs_{launch_idx}_{slot}"
    g.e(f"s_cmp_lg_u32 s{cond_sreg}, {cond_val}")
    g.e(f"s_cbranch_scc1 {lab}")
    g.e(f"s_load_dwordx2 s[92:93], s[0:1], {KA['dbg']}")
    g.e(("s_memrealtime" if real else "s_memtime") + " s[96:97]")
    g.e("s_waitcnt lgkmcnt(0)")
    g.e(f"s_add_u32 s92, s92, {512*(2-launch_idx)}")
    g.e("s_addc_u32 s93, s93, 0")
    g.e("s_mov_b32 s94, 256")
    g.e(f"s_mov_b32 s95, 0x{SRD3:08x}")
    g.e(f"v_mov_b32 v{vt}, {4*slot}")
    g.e(f"v_mov_b32 v{vt+1}, s96")
    g.e(f"buffer_store_dword v{vt+1}, v{vt}, s[92:95], 0 offen")
    g.e("s_waitcnt vmcnt(0)")
    g.lab(lab)


KF = 0x0
K_KT = 2560
K_HP = 64 * K_KT
VF2 = 0x500000
V_KT = 1536
V_HD = 64 * V_KT
```

```python
from common import *
from gemm import *
from sync import *
from ssm2 import ACC, FS, V_XD, V_YD, V_XA, V_YA, V_LANE, V_CH, V_T, tile_decode

DG = 28
V_HD, V_HA = 9, 44
V_XB = 46


def g2b(g, treg, pfx="g2", prio_s=None, hld="", la=4, earlyd=True, pollx=None, rot=True):
    S_X, S_CR, S_WS, S_CI = 8, 12, 16, 20
    sC, sCB, sHO, sXB, sCO, sM0, sT0, sT1, sWT, sWC, sK, sK2 = range(25, 37)
    sWV = S_WAVE
    L, T = V_LANE, V_T
    g.e(f"s_load_dwordx2 s[40:41], s[0:1], {KA['A_x']}")
    g.e(f"s_load_dwordx4 s[44:47], s[0:1], {KA['C_re']}")
    g.e(f"s_load_dwordx2 s[48:49], s[0:1], {KA['out']}")
    g.e(f"s_load_dwordx2 s[54:55], s[0:1], {KA['Dskip']}")
    g.e(f"s_load_dwordx2 s[62:63], s[0:1], {KA['ws']}")
    lane(g, L)
    tile_decode(g, treg, sC, sCB, sT0)
    g.e(f"s_lshr_b32 s{sWT}, s{sWV}, 1")
    g.e(f"s_and_b32 s{sWC}, s{sWV}, 1")
    g.e(f"v_and_b32 v{T+4}, 31, v{L}")
    g.e(f"s_lshl_b32 s{sT0}, s{sCB}, 7")
    g.e(f"s_lshl_b32 s{sT1}, s{sWC}, 6")
    g.e(f"s_add_u32 s{sT0}, s{sT0}, s{sT1}")
    g.e(f"v_add_u32 v{V_CH}, s{sT0}, v{T+4}")
    g.e(f"v_lshlrev_b32 v{T+5}, 1, v{V_CH}")
    g.e(f"v_lshlrev_b32 v{V_HD}, 4, v{L}")
    g.e(f"s_lshl_b32 s{sT0}, s{sC}, 2")
    g.e(f"s_add_u32 s{sT0}, s{sT0}, s{sWV}")
    g.e(f"s_mul_i32 s{sHO}, s{sT0}, {H_TT}")
    g.e(f"s_add_u32 s{sHO}, s{sHO}, {HT}")
    g.e(f"s_mul_i32 s{sCO}, s{sCB}, {128*1280}")
    g.e(f"s_and_b32 s{sK}, s{sC}, 1")
    g.e(f"s_mul_i32 s{sK}, s{sK}, 5")
    g.e(f"s_lshl_b32 s{sT0}, s{sCB}, 1")
    g.e(f"s_add_u32 s{sK}, s{sK}, s{sT0}")
    g.e(f"s_cmp_ge_u32 s{sK}, 10")
    g.e(f"s_cselect_b32 s{sT0}, 10, 0")
    g.e(f"s_sub_u32 s{sK}, s{sK}, s{sT0}")
    if not rot:
        g.e(f"s_mov_b32 s{sK}, 0")
    g.e(f"s_mov_b32 s{sK2}, s{sK}")
    g.e(f"s_lshl_b32 s{sT0}, s{sK}, 12")
    g.e(f"s_add_u32 s{sHO}, s{sHO}, s{sT0}")
    g.e(f"s_lshl_b32 s{sT0}, s{sK}, 7")
    g.e(f"s_add_u32 s{sCO}, s{sCO}, s{sT0}")
    g.e(f"s_lshl_b32 s{sM0}, s{sWV}, 12")
    g.e(f"s_mul_i32 s{sXB}, s{sC}, {128*1280}")
    g.e(f"s_lshl_b32 s{sT0}, s{sCB}, 8")
    g.e(f"s_add_u32 s{sXB}, s{sXB}, s{sT0}")
    g.e(f"s_mul_i32 s{sT0}, s{sWV}, {32*1280}")
    direct_dma_voff(g, V_XD, L, T, T + 1, 1280, 4, sT0)
    g.e("s_waitcnt lgkmcnt(0)")
    g.e(f"global_load_ushort v{T+6}, v{T+5}, s[54:55]")
    g.e(f"global_load_ushort v{T+7}, v{T+5}, s[54:55] offset:64")
    srd(g, S_X, 40, 2048 * 1280)
    srd(g, S_CR, 44, 640 * 1280)
    srd(g, S_CI, 46, 640 * 1280)
    srd(g, S_WS, 62, WS_USED)
    g.e(f"s_lshl_b32 s{sT0}, s{sWT}, 6")
    g.e(f"v_add_u32 v{T+1}, s{sT0}, v{T+4}")
    g.e(f"v_lshrrev_b32 v{T+2}, 5, v{L}")
    direct_rd_addr(g, V_XA, T + 1, T + 2, T + 3)
    g.e(f"s_lshl_b32 s{sT0}, s{sWC}, 14")
    for s in range(4):
        g.e(f"v_add_u32 v{V_XA+s}, s{sT0}, v{V_XA+s}")
    g.e(f"v_add_u32 v{T+1}, s{sT1}, v{T+4}")
    direct_rd_addr(g, V_YA, T + 1, T + 2, T + 3)
    g.e(f"v_lshlrev_b32 v{T+1}, 9, v{T+2}")
    g.e(f"v_bfe_u32 v{T+3}, v{L}, 1, 1")
    g.e(f"v_lshl_add_u32 v{T+1}, v{T+3}, 7, v{T+1}")
    g.e(f"v_bfe_u32 v{T+3}, v{L}, 4, 1")
    g.e(f"v_lshl_add_u32 v{T+1}, v{T+3}, 6, v{T+1}")
    g.e(f"v_bfe_u32 v{T+3}, v{L}, 2, 2")
    g.e(f"v_lshl_add_u32 v{T+1}, v{T+3}, 4, v{T+1}")
    g.e(f"v_and_b32 v{T+3}, 1, v{L}")
    g.e(f"v_lshl_add_u32 v{T+1}, v{T+3}, 3, v{T+1}")
    g.e(f"s_lshl_b32 s{sT0}, s{sWT}, 13")
    g.e(f"v_add_u32 v{V_HA}, s{sT0}, v{T+1}")
    g.e(f"v_add_u32 v{V_HA+1}, {4*SLOT}, v{V_HA}")
    g.e(f"v_and_b32 v{T+3}, 1, v{T+4}")
    g.e(f"v_lshlrev_b32 v{T+3}, 4, v{T+3}")
    g.e(f"v_lshrrev_b32 v{T+1}, 1, v{T+4}")
    g.e(f"v_lshlrev_b32 v{T+2}, 2, v{T+2}")
    g.e(f"v_sub_u32 v{T+1}, v{T+1}, v{T+2}")
    g.e("s_waitcnt vmcnt(0)")
    g.e(f"v_lshlrev_b32 v{T+6}, v{T+3}, v{T+6}")
    g.e(f"v_lshlrev_b32 v{T+7}, v{T+3}, v{T+7}")
    for u in range(2):
        for q in range(4):
            g.e(f"v_cmp_eq_u32 s[{40+2*q}:{41+2*q}], {8*u+q}, v{T+1}")
        for b in range(2):
            for q in range(4):
                g.e(f"v_cndmask_b32 v{DG+8*b+4*u+q}, 0, v{T+6+b}, s[{40+2*q}:{41+2*q}]")
    g.e(f"v_lshrrev_b32 v{T}, 5, v{L}")
    g.e(f"v_mul_u32_u24 v{T}, {4*5120}, v{T}")
    g.e(f"v_lshl_add_u32 v{T}, v{V_CH}, 2, v{T}")
    for i in range(1, 4):
        g.e(f"v_add_u32 v{T+i}, {5120*i}, v{T}")
    g.e("s_mov_b32 s38, 128")
    g.e(f"s_cmp_lg_u32 s{sWV}, 0")
    g.e(f"s_cbranch_scc1 {pfx}_wait")
    g.e(f"s_lshl_b32 s{sT0}, s{sC}, {FP+4}")
    g.e(f"s_add_u32 s{sT0}, s{sT0}, {F_H}")
    g.e(f"v_min_u32 v{T+8}, 9, v{L}")
    g.e(f"v_lshlrev_b32 v{T+8}, {FP}, v{T+8}")
    g.e(f"v_add_u32 v{T+8}, s{sT0}, v{T+8}")
    poll_flags(g, S_WS, T + 8, T + 9, pfx + "h", sleep=4, extra=pollx, mask=False)
    g.lab(f"{pfx}_wait")
    g.e("s_barrier")
    stamp(g, 5)
    if prio_s:
        prio_s()

    def adv(sk, so, sh):
        return (f"\ns_add_u32 s{sk}, s{sk}, 1\ns_cmp_eq_u32 s{sk}, 10\ns_cselect_b32 s{sk}, 0, s{sk}"
                f"\ns_cselect_b32 s37, {-9*128}, s38" + (f"\ns_lshl_b32 s37, s37, {sh}" if sh else "") + f"\ns_add_u32 s{so}, s{so}, s37")

    def xdma(slot, colb):
        o = [f"s_add_u32 m0, s{sM0}, {slot*SLOT}\ns_add_u32 s37, s{sXB}, {colb}"]
        for i in range(4):
            o.append(f"buffer_load_dwordx4 v{V_XD+i}, s[{S_X}:{S_X+3}], s37 offen offset:{1024*i} lds")
        return o

    def hdma(stage, slot):
        if stage == 20:
            assert slot == 0
            return xdma(slot, 0)
        o = [f"s_add_u32 m0, s{sM0}, {slot*SLOT}\ns_nop 0"]
        for i in range(4):
            o.append(f"buffer_load_dwordx4 v{V_HD}, s[{S_WS}:{S_WS+3}], s{sHO} offen offset:{1024*i} {hld} lds")
        o[-1] += adv(sK, sHO, 5)
        if stage == 9:
            o[-1] += f"\ns_add_u32 s{sHO}, s{sHO}, 40960"
        return o

    def cdma(stage, slot):
        if stage == 20:
            assert slot == 1
            return xdma(slot, 128)
        S = S_CR if stage < 10 else S_CI
        o = [f"s_add_u32 m0, s{sM0}, {slot*SLOT}\ns_nop 0"]
        for i in range(4):
            o.append(f"buffer_load_dwordx4 v{V_XD+i}, s[{S}:{S+3}], s{sCO} offen offset:{1024*i} lds")
        o[-1] += adv(sK2, sCO, 0)
        return o

    def hreads(stage, slot, st):
        if stage == 20:
            return []
        out = []
        for s in range(4):
            for a in range(2):
                for j in range(2):
                    hi, imm = lds_off(slot, 4096 * a + 1024 * s + 256 * j)
                    out.append(f"ds_read_b64_tr_b16 {vr(FS[st]+4*(2*s+a)+2*j,2)}, v{V_HA+(1 if hi else 0)} offset:{imm}")
        return out

    def creads(stage, slot, st):
        if stage == 20:
            return [f"ds_read_b128 {vr(FS[st]+4*(2*s+a),4)}, v{V_XA+s} offset:{4096*a}" for s in range(4) for a in range(2)]
        return direct_reads(V_YA, slot, lambda ti, s: FS[st] + 32 + 4 * (2 * s + ti), [0, 4096])

    def mf(s, st):
        out = []
        for ks in range(4):
            for a in range(2):
                if s == 20:
                    b = ks >> 1
                    out.append(mfma16(ACC + 16 * (2 * a + b), FS[st] + 4 * (2 * ks + a), DG + 8 * b + 4 * (ks & 1)))
                    continue
                for b in range(2):
                    out.append(mfma16(ACC + 16 * (2 * a + b), FS[st] + 4 * (2 * ks + a), FS[st] + 32 + 4 * (2 * ks + b),
                                      "0" if (s == 0 and ks == 0) else None))
        return out

    gemm_core(g, 21, Chunk(4, hdma, hreads), Chunk(4, cdma, creads), mf, la=la, early=earlyd)
    stamp(g, 6)
    g.e("s_setprio 3")
    S_OUT = 12
    srd(g, S_OUT, 48, 2048 * 5120)
    g.e(f"s_lshl_b32 s{sT0}, s{sC}, 1")
    g.e(f"s_add_u32 s{sT0}, s{sT0}, s{sWT}")
    g.e(f"s_mul_i32 s{sT0}, s{sT0}, {64*5120}")
    g.e("s_nop 4")
    for a in range(2):
        for j in range(4):
            for b in range(2):
                for i in range(4):
                    g.e(f"buffer_store_dword v{ACC+16*(2*a+b)+4*j+i}, v{T+i}, s[{S_OUT}:{S_OUT+3}], s{sT0} offen offset:{128*b}")
            g.e(f"s_add_u32 s{sT0}, s{sT0}, {8*5120}")
```

```python
from common import *
from gemm import *
from sync import *

ACC = 64
FS = [128, 192]
V_XD = 1
V_WD = 5
V_XA = 10
V_WA = 18
V_LANE = 22
V_T = 24
QSCALE = 1.4426950408889634 / (20 ** 0.5)


def f32hex(x):
    import struct
    return "0x%08x" % struct.unpack("<I", struct.pack("<f", x))[0]


def g3(g, sc="", rot=True, pfx="g3", done_label=None, ntx="", ntw="", fine=False):
    S_X, S_W, S_WS = 8, 12, 16
    sTB, sCT, sXO, sXB, sXE, sWO, sWB, sWE, sM0, sT0, sT1 = range(25, 36)
    sWV = S_WAVE
    g.e(f"s_load_dwordx4 s[40:43], s[0:1], {KA['B_x']}")
    g.e(f"s_load_dwordx4 s[44:47], s[0:1], {KA['dbg']}")
    lane(g, V_LANE)
    g.e(f"s_and_b32 s{sT0}, s2, 7")
    g.e(f"s_lshr_b32 s{sT1}, s2, 3")
    g.e(f"s_and_b32 s{sCT}, s{sT0}, 1")
    g.e(f"s_mul_i32 s{sCT}, s{sCT}, 30")
    g.e(f"s_add_u32 s{sT1}, s{sT1}, s{sCT}")
    g.e(f"s_lshr_b32 s{sCT}, s{sT1}, 2")
    g.e(f"s_and_b32 s{sT1}, s{sT1}, 3")
    g.e(f"s_lshr_b32 s{sT0}, s{sT0}, 1")
    g.e(f"s_lshl_b32 s{sTB}, s{sT0}, 2")
    g.e(f"s_add_u32 s{sTB}, s{sTB}, s{sT1}")
    if rot == "full":
        g.e(f"s_mul_i32 s{sT1}, s{sT1}, 3")
        g.e(f"s_add_u32 s{sT1}, s{sT1}, s{sCT}")
        g.e(f"s_cmp_ge_u32 s{sT1}, 10")
        g.e(f"s_cselect_b32 s{sT0}, 10, 0")
        g.e(f"s_sub_u32 s{sT1}, s{sT1}, s{sT0}")
        g.e(f"s_cmp_ge_u32 s{sT1}, 10")
        g.e(f"s_cselect_b32 s{sT0}, 10, 0")
        g.e(f"s_sub_u32 s{sT1}, s{sT1}, s{sT0}")
    elif rot == "2":
        g.e(f"s_add_u32 s{sT1}, s{sT1}, s{sCT}")
        g.e(f"s_and_b32 s{sT1}, s{sT1}, 1")
        g.e(f"s_mul_i32 s{sT1}, s{sT1}, 5")
    elif rot == "4":
        g.e(f"s_add_u32 s{sT1}, s{sT1}, s{sCT}")
        g.e(f"s_and_b32 s{sT1}, s{sT1}, 3")
        g.e(f"s_mul_i32 s{sT1}, s{sT1}, 5")
        g.e(f"s_lshr_b32 s{sT1}, s{sT1}, 1")
    else:
        g.e(f"s_mov_b32 s{sT1}, 0")
    g.e(f"s_mul_i32 s{sXB}, s{sTB}, {128*1280}")
    g.e(f"s_add_u32 s{sXE}, s{sXB}, 1280")
    g.e(f"s_lshl_b32 s{sXO}, s{sT1}, 7")
    g.e(f"s_add_u32 s{sXO}, s{sXO}, s{sXB}")
    g.e(f"s_lshl_b32 s{sWB}, s{sCT}, 8")
    g.e(f"s_add_u32 s{sWE}, s{sWB}, {640*3840}")
    g.e(f"s_mul_i32 s{sWO}, s{sT1}, {64*3840}")
    g.e(f"s_add_u32 s{sWO}, s{sWO}, s{sWB}")
    g.e(f"s_lshl_b32 s{sM0}, s{sWV}, 12")
    g.e(f"s_mul_i32 s{sT0}, s{sWV}, {32*1280}")
    direct_dma_voff(g, V_XD, V_LANE, V_T, V_T + 1, 1280, 4, sT0)
    g.e(f"v_lshrrev_b32 v{V_T}, 4, v{V_LANE}")
    g.e(f"v_lshlrev_b32 v{V_T+1}, 2, v{V_T}")
    g.e(f"v_xor_b32 v{V_T+1}, v{V_T+1}, v{V_LANE}")
    g.e(f"v_and_b32 v{V_T+1}, 15, v{V_T+1}")
    g.e(f"v_lshlrev_b32 v{V_T+1}, 4, v{V_T+1}")
    g.e(f"v_mul_u32_u24 v{V_T}, 3840, v{V_T}")
    g.e(f"v_add_u32 v{V_T}, v{V_T}, v{V_T+1}")
    g.e(f"s_mul_i32 s{sT0}, s{sWV}, {16*3840}")
    g.e(f"v_add_u32 v{V_WD}, s{sT0}, v{V_T}")
    for i in range(1, 4):
        g.e(f"v_add_u32 v{V_WD+i}, {i*(4*3840-1024)}, v{V_WD}")
    g.e("s_waitcnt lgkmcnt(0)")
    if fine: stamp(g, 1)
    srd(g, S_X, 40, 2048 * 1280)
    srd(g, S_W, 42, 640 * 3840)

    def xdma(stage, slot):
        o = [f"s_add_u32 m0, s{sM0}, {slot*SLOT}"]
        for i in range(4):
            o.append(f"buffer_load_dwordx4 v{V_XD+i}, s[{S_X}:{S_X+3}], s{sXO} offen offset:{1024*i} {ntx} lds")
        o[-1] += f"\ns_add_u32 s{sXO}, s{sXO}, 128\ns_cmp_eq_u32 s{sXO}, s{sXE}\ns_cselect_b32 s{sXO}, s{sXB}, s{sXO}"
        o[0] += "\ns_nop 0"
        return o

    def wdma(stage, slot):
        o = [f"s_add_u32 m0, s{sM0}, {slot*SLOT}\ns_nop 0"]
        for i in range(4):
            o.append(f"buffer_load_dwordx4 v{V_WD+i}, s[{S_W}:{S_W+3}], s{sWO} offen offset:{1024*i} {ntw} lds")
        o[-1] += f"\ns_add_u32 s{sWO}, s{sWO}, {64*3840}\ns_cmp_eq_u32 s{sWO}, s{sWE}\ns_cselect_b32 s{sWO}, s{sWB}, s{sWO}"
        return o

    def xreads(stage, slot, st):
        return direct_reads(V_XA, slot, lambda ti, s: FS[st] + 4 * (2 * s + ti), [0, 4096])

    def wreads(stage, slot, st):
        out = []
        for s in range(4):
            for b in range(2):
                for j in range(2):
                    hi, imm = lds_off(slot, 4096 * s + 1024 * j)
                    d = FS[st] + 32 + 4 * (2 * s + b) + 2 * j
                    out.append(f"ds_read_b64_tr_b16 {vr(d,2)}, v{V_WA + b + (2 if hi else 0)} offset:{imm}")
        return out

    def rd_addrs(isv):
        g.e(f"v_and_b32 v{V_T}, 31, v{V_LANE}")
        g.e(f"s_lshr_b32 s{sT0}, s{sWV}, 1")
        g.e(f"s_lshl_b32 s{sT0}, s{sT0}, 6")
        g.e(f"v_add_u32 v{V_T}, s{sT0}, v{V_T}")
        g.e(f"v_lshrrev_b32 v{V_T+1}, 5, v{V_LANE}")
        direct_rd_addr(g, V_XA, V_T, V_T + 1, V_T + 2)
        g.e(f"v_bfe_u32 v{V_T}, v{V_LANE}, 2, 2")
        g.e(f"v_lshlrev_b32 v{V_T+2}, 3, v{V_T+1}")
        g.e(f"v_add_u32 v{V_T+2}, v{V_T+2}, v{V_T}")
        g.e(f"v_lshlrev_b32 v{V_T+2}, 8, v{V_T+2}")
        g.e(f"s_and_b32 s{sT0}, s{sWV}, 1")
        g.e(f"s_lshl_b32 s{sT0}, s{sT0}, 1")
        g.e(f"v_xor_b32 v{V_T+3}, s{sT0}, v{V_T}")
        g.e(f"v_lshlrev_b32 v{V_T+3}, 6, v{V_T+3}")
        g.e(f"v_add_u32 v{V_T+2}, v{V_T+2}, v{V_T+3}")
        if isv:
            g.e(f"v_and_b32 v{V_T+3}, 3, v{V_LANE}")
        else:
            g.e(f"v_and_b32 v{V_T+3}, 1, v{V_LANE}")
            g.e(f"v_lshlrev_b32 v{V_T+3}, 1, v{V_T+3}")
            g.e(f"v_bfe_u32 v{V_T+4}, v{V_LANE}, 1, 1")
            g.e(f"v_or_b32 v{V_T+3}, v{V_T+3}, v{V_T+4}")
        g.e(f"v_bfe_u32 v{V_T+4}, v{V_LANE}, 4, 1")
        g.e(f"v_lshl_add_u32 v{V_T+3}, v{V_T+4}, 2, v{V_T+3}")
        g.e(f"v_lshl_add_u32 v{V_WA}, v{V_T+3}, 3, v{V_T+2}")
        g.e(f"v_xor_b32 v{V_WA+1}, 64, v{V_WA}")
        g.e(f"v_add_u32 v{V_WA+2}, {4*SLOT}, v{V_WA}")
        g.e(f"v_add_u32 v{V_WA+3}, {4*SLOT}, v{V_WA+1}")

    def mk_mfmas(isv):
        def f(s, st):
            out = []
            for ks in range(4):
                for a in range(2):
                    for b in range(2):
                        X = FS[st] + 4 * (2 * ks + a)
                        W = FS[st] + 32 + 4 * (2 * ks + b)
                        d = ACC + 16 * (2 * a + b)
                        c = "0" if (s == 0 and ks == 0) else None
                        out.append(mfma16(d, X, W, c) if isv else mfma16(d, W, X, c))
            return out
        return f

    g.e(f"s_cmp_ge_u32 s{sCT}, 10")
    g.e(f"s_cbranch_scc1 {pfx}_v")
    gemm_core(g, 10, Chunk(4, xdma, xreads), Chunk(4, wdma, wreads), mk_mfmas(False), after_issue=lambda: rd_addrs(False), stamps=(4, 5, 3) if fine else (1, 2, 3), fine=fine)
    if not fine: stamp(g, 4)
    srd(g, S_WS, 46, WS_USED)
    g.e(f"v_lshlrev_b32 v{V_T}, 4, v{V_LANE}")
    g.e(f"s_lshr_b32 s{sT0}, s{sWV}, 1")
    g.e(f"s_lshl_b32 s{sT0}, s{sT0}, 1")
    g.e(f"s_lshl_b32 s{sT1}, s{sTB}, 2")
    g.e(f"s_add_u32 s{sT0}, s{sT0}, s{sT1}")
    g.e(f"s_mul_i32 s{sT0}, s{sT0}, {QK_TT}")
    g.e(f"s_lshl_b32 s{sT1}, s{sCT}, 13")
    g.e(f"s_add_u32 s{sT0}, s{sT0}, s{sT1}")
    g.e(f"s_and_b32 s{sT1}, s{sWV}, 1")
    g.e(f"s_lshl_b32 s{sT1}, s{sT1}, 12")
    g.e(f"s_add_u32 s{sT0}, s{sT0}, s{sT1}")
    if QKF:
        g.e(f"s_add_u32 s{sT0}, s{sT0}, {QKF}")
    g.e(f"s_add_u32 s{sT1}, s{sT0}, {QK_TT}")
    g.e("s_nop 7")
    g.e(f"s_cmp_ge_u32 s{sCT}, 5")
    g.e(f"s_cbranch_scc1 {pfx}_noscale")
    g.e(f"s_mov_b32 s36, {f32hex(QSCALE)}")
    g.e(f"s_mov_b32 s37, s36")
    for r in range(0, 64, 2):
        g.e(f"v_pk_mul_f32 {vr(ACC+r,2)}, {vr(ACC+r,2)}, s[36:37]")
    g.lab(f"{pfx}_noscale")
    for a in range(2):
        for b in range(2):
            for m in range(2):
                src = ACC + 16 * (2 * a + b) + 8 * m
                d = FS[0] + 4 * (4 * a + 2 * b + m)
                for q in range(4):
                    g.e(f"v_cvt_pk_bf16_f32 v{d+q}, v{src+2*q}, v{src+2*q+1}")
                g.e(f"buffer_store_dwordx4 {vr(d,4)}, v{V_T}, s[{S_WS}:{S_WS+3}], s{sT0+a} offen offset:{2048*b+1024*m} {sc}")
    g.e(f"s_branch {pfx}_done")
    g.lab(f"{pfx}_v")
    gemm_core(g, 10, Chunk(4, xdma, xreads), Chunk(4, wdma, wreads), mk_mfmas(True), after_issue=lambda: rd_addrs(True), stamps=(4, 5, 3) if fine else (1, 2, 3), fine=fine)
    if not fine: stamp(g, 4)
    srd(g, S_WS, 46, WS_USED)
    g.e(f"v_lshrrev_b32 v{V_T}, 5, v{V_LANE}")
    g.e(f"v_mul_u32_u24 v{V_T}, {V_ROW}, v{V_T}")
    g.e(f"v_and_b32 v{V_T+1}, 31, v{V_LANE}")
    g.e(f"v_lshl_add_u32 v{V_T}, v{V_T+1}, 4, v{V_T}")
    g.e(f"v_add_u32 v{V_T+1}, {2*V_ROW}, v{V_T}")
    g.e(f"s_lshr_b32 s{sT0}, s{sWV}, 1")
    g.e(f"s_lshl_b32 s{sT0}, s{sT0}, 1")
    g.e(f"s_lshl_b32 s{sT1}, s{sTB}, 2")
    g.e(f"s_add_u32 s{sT0}, s{sT0}, s{sT1}")
    g.e(f"s_mul_i32 s{sT0}, s{sT0}, {V_TT}")
    g.e(f"s_sub_u32 s{sT1}, s{sCT}, 10")
    g.e(f"s_lshl_b32 s{sT1}, s{sT1}, 11")
    g.e(f"s_add_u32 s{sT0}, s{sT0}, s{sT1}")
    g.e(f"s_and_b32 s{sT1}, s{sWV}, 1")
    g.e(f"s_lshl_b32 s{sT1}, s{sT1}, 10")
    g.e(f"s_add_u32 s{sT0}, s{sT0}, s{sT1}")
    g.e(f"s_add_u32 s{sT0}, s{sT0}, {VF}")
    g.e(f"s_add_u32 s{sT1}, s{sT0}, {V_TT}")
    g.e("s_nop 7")
    for a in range(2):
        for b in range(2):
            for m in range(2):
                src = ACC + 16 * (2 * a + b) + 8 * m
                d = FS[0] + 4 * (4 * a + 2 * b + m)
                for q in range(4):
                    g.e(f"v_cvt_pk_bf16_f32 v{d+q}, v{src+2*q}, v{src+2*q+1}")
                g.e(f"buffer_store_dwordx4 {vr(d,4)}, v{V_T+m}, s[{S_WS}:{S_WS+3}], s{sT0+a} offen offset:{512*b} {sc}")
    g.e(f"s_cmp_eq_u32 s{sCT}, 14")
    g.e(f"s_cbranch_scc0 {pfx}_done")
    g.e(f"s_lshl_b32 s{sT0}, s{sTB}, 2")
    g.e(f"s_add_u32 s{sT0}, s{sT0}, s{sWV}")
    g.e(f"s_mul_i32 s{sT0}, s{sT0}, {V_TT}")
    g.e(f"s_add_u32 s{sT0}, s{sT0}, {VF + 640*16}")
    g.e(f"v_and_b32 v{V_T}, 3, v{V_LANE}")
    g.e(f"v_mul_u32_u24 v{V_T}, {V_ROW}, v{V_T}")
    for q in range(4):
        g.e(f"v_mov_b32 v{V_T+2+q}, 0x3f803f80")
    g.e(f"buffer_store_dwordx4 {vr(V_T+2,4)}, v{V_T}, s[{S_WS}:{S_WS+3}], s{sT0} offen {sc}")
    g.lab(f"{pfx}_done")
    if sc:
        g.e(f"s_cmp_lg_u32 s{sWV}, 0")
        g.e(f"s_cbranch_scc1 {pfx}_w")
        srd(g, 20, 44, 256)
        get_nonce(g, 20, V_T, pfx)
        g.lab(f"{pfx}_w")
        g.e(f"s_lshl_b32 s{sT0}, s{sCT}, {FP+4}")
        g.e(f"s_lshl_b32 s{sT1}, s{sTB}, {FP}")
        g.e(f"s_add_u32 s{sT0}, s{sT0}, s{sT1}")
        g.e(f"s_add_u32 s{sT0}, s{sT0}, {F_G3}")
        g.e("s_waitcnt vmcnt(0)")
        g.e("s_barrier")
        g.e(f"s_cmp_lg_u32 s{sWV}, 0")
        g.e(f"s_cbranch_scc1 {pfx}_w2")
        put_flag(g, S_WS, sT0, V_T)
        g.lab(f"{pfx}_w2")
```

```python
from common import *
from gemm import *
from sync import *
from g3 import f32hex, QSCALE

ACC = 64
FS = [128, 192]
V_XD = 1
V_WD = 5
V_XA = 10
V_WA = 18
V_LANE = 22
V_T = 24
S_HP, S_QB = 25, 26


def t_decode(g, sT0, sT1):
    g.e(f"s_and_b32 s{sT0}, s2, 7")
    g.e(f"s_lshr_b32 s{sT1}, s2, 3")
    g.e(f"s_and_b32 s{S_QB}, s{sT1}, 15")
    g.e(f"s_lshr_b32 s{sT1}, s{sT1}, 4")
    g.e(f"s_lshl_b32 s{S_HP}, s{sT0}, 1")
    g.e(f"s_add_u32 s{S_HP}, s{S_HP}, s{sT1}")


def g3l(g, rot="a", pfx="g3", ntx="", ntw="", qdst=None, trig_stage=None, st=""):
    S_X, S_W, S_WS = 12, 16, 8
    sXO, sXB, sXE, sWO, sWB, sWE, sM0, sT0, sT1 = range(27, 36)
    sWV, sTB = S_WAVE, S_QB
    T, L = V_T, V_LANE
    g.e(f"s_load_dwordx4 s[40:43], s[0:1], {KA['B_x']}")
    g.e(f"s_load_dwordx4 s[44:47], s[0:1], {KA['dbg']}")
    lane(g, L)
    t_decode(g, sT0, sT1)
    if rot == "a":
        g.e(f"s_mul_i32 s{sT1}, s{sT1}, 5")
        g.e(f"s_add_u32 s{sT1}, s{sT1}, s{sTB}")
        for _ in range(2):
            g.e(f"s_cmp_ge_u32 s{sT1}, 10")
            g.e(f"s_cselect_b32 s{sT0}, 10, 0")
            g.e(f"s_sub_u32 s{sT1}, s{sT1}, s{sT0}")
    elif rot == "b":
        g.e(f"s_mul_i32 s{sT1}, s{sT1}, 5")
    elif rot == "c":
        g.e(f"s_mul_i32 s{sT1}, s{sT1}, 5")
        g.e(f"s_and_b32 s{sT0}, s{sTB}, 3")
        g.e(f"s_add_u32 s{sT1}, s{sT1}, s{sT0}")
    else:
        g.e(f"s_mov_b32 s{sT1}, 0")
    g.e(f"s_mul_i32 s{sXB}, s{sTB}, {128*1280}")
    g.e(f"s_add_u32 s{sXE}, s{sXB}, 1280")
    g.e(f"s_lshl_b32 s{sXO}, s{sT1}, 7")
    g.e(f"s_add_u32 s{sXO}, s{sXO}, s{sXB}")
    g.e(f"s_mul_i32 s{sWB}, s{S_HP}, 80")
    g.e(f"s_add_u32 s{sWE}, s{sWB}, {640*3840}")
    g.e(f"s_mul_i32 s{sWO}, s{sT1}, {64*3840}")
    g.e(f"s_add_u32 s{sWO}, s{sWO}, s{sWB}")
    g.e(f"s_lshl_b32 s{sM0}, s{sWV}, 12")
    g.e(f"s_mul_i32 s{sT0}, s{sWV}, {32*1280}")
    direct_dma_voff(g, V_XD, L, T, T + 1, 1280, 4, sT0)
    g.e(f"v_lshrrev_b32 v{T}, 4, v{L}")
    g.e(f"v_lshlrev_b32 v{T+1}, 2, v{T}")
    g.e(f"v_xor_b32 v{T+1}, v{T+1}, v{L}")
    g.e(f"v_and_b32 v{T+1}, 15, v{T+1}")
    g.e(f"v_mul_u32_u24 v{T+2}, 52, v{T+1}")
    g.e(f"v_lshrrev_b32 v{T+2}, 8, v{T+2}")
    g.e(f"v_mul_u32_u24 v{T+2}, {1280-80}, v{T+2}")
    g.e(f"v_lshl_add_u32 v{T+2}, v{T+1}, 4, v{T+2}")
    g.e(f"v_mul_u32_u24 v{T}, 3840, v{T}")
    g.e(f"s_mul_i32 s{sT0}, s{sWV}, {16*3840}")
    g.e(f"v_add3_u32 v{V_WD}, v{T}, v{T+2}, s{sT0}")
    g.e(f"v_cmp_eq_u32 vcc, 15, v{T+1}")
    g.e(f"v_mov_b32 v{T+2}, 0x70000000")
    g.e("s_nop 0")
    g.e(f"v_cndmask_b32 v{V_WD}, v{V_WD}, v{T+2}, vcc")
    for i in range(1, 4):
        g.e(f"v_add_u32 v{V_WD+i}, {i*(4*3840-1024)}, v{V_WD}")
    g.e("s_waitcnt lgkmcnt(0)")
    srd(g, S_X, 40, 2048 * 1280)
    srd(g, S_W, 42, 640 * 3840)

    def xdma(stage, slot):
        o = [f"s_add_u32 m0, s{sM0}, {slot*SLOT}\ns_nop 0"]
        for i in range(4):
            o.append(f"buffer_load_dwordx4 v{V_XD+i}, s[{S_X}:{S_X+3}], s{sXO} offen offset:{1024*i} {ntx} lds")
        o[-1] += f"\ns_add_u32 s{sXO}, s{sXO}, 128\ns_cmp_eq_u32 s{sXO}, s{sXE}\ns_cselect_b32 s{sXO}, s{sXB}, s{sXO}"
        return o

    def wdma(stage, slot):
        o = [f"s_add_u32 m0, s{sM0}, {slot*SLOT}\ns_nop 0"]
        for i in range(4):
            o.append(f"buffer_load_dwordx4 v{V_WD+i}, s[{S_W}:{S_W+3}], s{sWO} offen offset:{1024*i} {ntw} lds")
        o[-1] += f"\ns_add_u32 s{sWO}, s{sWO}, {64*3840}\ns_cmp_eq_u32 s{sWO}, s{sWE}\ns_cselect_b32 s{sWO}, s{sWB}, s{sWO}"
        return o

    def xreads(stage, slot, st):
        return direct_reads(V_XA, slot, lambda ti, s: FS[st] + 4 * (2 * s + ti), [0, 4096])

    def wreads(stage, slot, st):
        out = []
        for s in range(4):
            for b in range(2):
                for j in range(2):
                    hi, imm = lds_off(slot, 4096 * s + 1024 * j)
                    d = FS[st] + 32 + 4 * (2 * s + b) + 2 * j
                    out.append(f"ds_read_b64_tr_b16 {vr(d,2)}, v{V_WA + b + (2 if hi else 0)} offset:{imm}")
        return out

    def rd_addrs():
        g.e(f"v_and_b32 v{T}, 31, v{L}")
        g.e(f"s_lshr_b32 s{sT0}, s{sWV}, 1")
        g.e(f"s_lshl_b32 s{sT0}, s{sT0}, 6")
        g.e(f"v_add_u32 v{T}, s{sT0}, v{T}")
        g.e(f"v_lshrrev_b32 v{T+1}, 5, v{L}")
        direct_rd_addr(g, V_XA, T, T + 1, T + 2)
        g.e(f"v_bfe_u32 v{T}, v{L}, 2, 2")
        g.e(f"v_lshlrev_b32 v{T+2}, 3, v{T+1}")
        g.e(f"v_add_u32 v{T+2}, v{T+2}, v{T}")
        g.e(f"v_lshlrev_b32 v{T+2}, 8, v{T+2}")
        g.e(f"s_and_b32 s{sT0}, s{sWV}, 1")
        g.e(f"s_lshl_b32 s{sT0}, s{sT0}, 1")
        g.e(f"v_xor_b32 v{T+3}, s{sT0}, v{T}")
        g.e(f"v_lshlrev_b32 v{T+3}, 6, v{T+3}")
        g.e(f"v_add_u32 v{T+2}, v{T+2}, v{T+3}")
        g.e(f"v_and_b32 v{T+3}, 1, v{L}")
        g.e(f"v_lshlrev_b32 v{T+3}, 1, v{T+3}")
        g.e(f"v_bfe_u32 v{T+4}, v{L}, 1, 1")
        g.e(f"v_or_b32 v{T+3}, v{T+3}, v{T+4}")
        g.e(f"v_bfe_u32 v{T+4}, v{L}, 4, 1")
        g.e(f"v_lshl_add_u32 v{T+3}, v{T+4}, 2, v{T+3}")
        g.e(f"v_lshl_add_u32 v{V_WA}, v{T+3}, 3, v{T+2}")
        g.e(f"v_xor_b32 v{V_WA+1}, 64, v{V_WA}")
        g.e(f"v_add_u32 v{V_WA+2}, {4*SLOT}, v{V_WA}")
        g.e(f"v_add_u32 v{V_WA+3}, {4*SLOT}, v{V_WA+1}")
        srd(g, S_WS, 46, WS_USED)
        srd(g, 20, 44, 256)
        g.e(f"s_lshr_b32 s{sT0}, s{sWV}, 1")
        g.e(f"s_lshl_b32 s{sT0}, s{sT0}, 14")
        g.e(f"s_and_b32 s{sT1}, s{sWV}, 1")
        g.e(f"s_lshl_b32 s{sT1}, s{sT1}, 12")
        g.e(f"s_add_u32 s{sT0}, s{sT0}, s{sT1}")
        g.e(f"v_lshlrev_b32 v{T+9}, 4, v{L}")
        g.e(f"v_add_u32 v{T+8}, s{sT0}, v{T+9}")
        g.e(f"v_cmp_gt_u32 vcc, 32, v{L}")
        g.e(f"v_subrev_u32 v{T+10}, 512, v{T+9}")
        g.e(f"v_mov_b32 v{T+11}, 0x70000000")
        g.e(f"v_cndmask_b32 v{T+10}, v{T+10}, v{T+11}, vcc")
        g.e(f"v_mov_b32 v{T+12}, 1.0")
        g.e(f"v_mov_b32 v{T+13}, {f32hex(QSCALE)}")
        g.e(f"v_cndmask_b32 v{T+12}, v{T+12}, v{T+13}, vcc")
        g.e(f"v_bfe_u32 v{T}, v{L}, 4, 1")
        g.e(f"v_and_b32 v{T+2}, 3, v{L}")
        g.e(f"v_lshl_add_u32 v{T}, v{T}, 2, v{T+2}")
        g.e(f"v_min_u32 v{T}, 4, v{T}")
        g.e(f"v_add_u32 v{T+2}, 6, v{T}")
        g.e(f"v_cmp_eq_u32 vcc, 4, v{T}")
        g.e(f"v_bfe_u32 v{T+3}, v{L}, 2, 2")
        g.e(f"v_lshl_add_u32 v{T+3}, v{T+1}, 2, v{T+3}")
        g.e(f"v_cndmask_b32 v{T+2}, v{T+2}, 5, vcc")
        g.e(f"s_lshl_b32 s{sT0}, s{sWV}, 13")
        g.e(f"s_add_u32 s{sT0}, s{sT0}, {10*512}")
        g.e(f"v_lshlrev_b32 v{T+3}, 4, v{T+3}")
        g.e(f"v_add_u32 v{T+3}, s{sT0}, v{T+3}")
        for h, f in ((0, T), (1, T + 2)):
            g.e(f"v_lshrrev_b32 v{T+4}, 1, v{f}")
            g.e(f"v_lshl_add_u32 v{T+4}, v{T+4}, 9, v{T+3}")
            g.e(f"v_and_b32 v{T+5}, 1, v{f}")
            g.e(f"v_lshl_add_u32 v{T+14+h}, v{T+5}, 3, v{T+4}")
        g.e(f"v_and_b32 v{T}, 31, v{L}")
        g.e(f"v_mul_u32_u24 v{T+16}, 384, v{T+1}")
        g.e(f"v_lshl_add_u32 v{T+16}, v{T}, 4, v{T+16}")
        g.e(f"v_cmp_lt_u32 vcc, 23, v{T}")
        g.e(f"v_cmp_le_u32 s[36:37], 20, v{T}")
        g.e(f"v_mov_b32 v{T+17}, 0x3f803f80")
        g.e(f"v_cndmask_b32 v{T+16}, v{T+16}, v{T+11}, vcc")
        g.e(f"v_cmp_eq_u32 vcc, 20, v{T}")
        g.e("s_nop 1")
        g.e(f"v_cndmask_b32 v{T+17}, 0, v{T+17}, vcc")
        g.e(f"s_and_b32 s{sT0}, s{sWV}, 1")
        g.e(f"s_lshl_b32 s{sT0}, s{sT0}, 14")
        g.e(f"s_lshr_b32 s{sT1}, s{sWV}, 1")
        g.e(f"s_mul_i32 s38, s{sT1}, 1536")
        g.e(f"s_add_u32 s38, s38, s{sT0}")
        g.e(f"v_add_u32 v{T+18}, s38, v{T+9}")
        g.e(f"s_lshl_b32 s38, s{sT1}, 3")
        g.e(f"s_add_u32 s38, s38, s{sT0}")
        g.e(f"s_add_u32 s38, s38, 1024")
        g.e(f"v_lshlrev_b32 v{T+19}, 13, v{T+1}")
        g.e(f"v_lshl_add_u32 v{T+19}, v{T}, 4, v{T+19}")
        g.e(f"v_add_u32 v{T+19}, s38, v{T+19}")
        g.e(f"v_xor_b32 v{T+20}, 16384, v{T+18}")
        g.e(f"v_xor_b32 v{T+21}, 16384, v{T+19}")

    def at_stage(s):
        if s == trig_stage:
            g.e(f"s_or_b32 s{sT0}, s2, s{sWV}")
            g.e(f"s_cmp_lg_u32 s{sT0}, 0")
            g.e(f"s_cbranch_scc1 {pfx}_ntr")
            g.e(f"v_mov_b32 v{T+22}, 128")
            g.e("s_mov_b64 exec, 1")
            g.e(f"buffer_store_dword v{T+22}, v{T+22}, s[20:23], 0 offen sc1")
            g.e("s_mov_b64 exec, -1")
            g.lab(f"{pfx}_ntr")

    def mfmas(s, st):
        out = []
        for ks in range(4):
            for a in range(2):
                for b in range(2):
                    X = FS[st] + 4 * (2 * ks + a)
                    W = FS[st] + 32 + 4 * (2 * ks + b)
                    out.append(mfma16(ACC + 16 * (2 * a + b), W, X, "0" if (s == 0 and ks == 0) else None))
        return out

    gemm_core(g, 10, Chunk(4, xdma, xreads), Chunk(4, wdma, wreads), mfmas, after_issue=rd_addrs, stamps=(1, 2, 3), at_stage=at_stage)
    stamp(g, 4)
    SR = f"s[{S_WS}:{S_WS+3}]"
    g.e(f"s_lshr_b32 s{sT0}, s{sWV}, 1")
    g.e(f"s_lshl_b32 s{sT0}, s{sT0}, 1")
    g.e(f"s_lshl_b32 s{sT1}, s{sTB}, 2")
    g.e(f"s_add_u32 s{sT0}, s{sT0}, s{sT1}")
    g.e(f"s_mul_i32 s{sT0}, s{sT0}, {K_KT}")
    g.e(f"s_mul_i32 s{sXO}, s{S_HP}, {K_HP}")
    g.e(f"s_add_u32 s{sT0}, s{sT0}, s{sXO}")
    if KF:
        g.e(f"s_add_u32 s{sT0}, s{sT0}, {KF}")
    g.e(f"s_add_u32 s{sXO}, s{sT0}, {K_KT}")
    g.e(f"s_mov_b32 s38, {f32hex(QSCALE)}")
    g.e("s_mov_b32 s39, s38")
    g.e("s_barrier")
    D = lambda a, b, m: FS[0] + 4 * (4 * a + 2 * b + m)
    A = lambda a, b, m: ACC + 16 * (2 * a + b) + 8 * m

    def pack(a, b, m):
        for q in range(4):
            g.e(f"v_cvt_pk_bf16_f32 v{D(a,b,m)+q}, v{A(a,b,m)+2*q}, v{A(a,b,m)+2*q+1}")

    def stage_wr(a, b, m):
        g.e(f"ds_write_b128 v{T+8}, {vr(D(a,b,m),4)} offset:{8192*a + 2048*b + 1024*m}")

    so = [sT0, sXO]
    g.e(f"s_bitcmp1_b32 s{sWV}, 0")
    g.e(f"s_cbranch_scc1 {pfx}_wf1")
    for a in range(2):
        pack(a, 1, 1)
        g.e(f"buffer_store_dwordx4 {vr(D(a,1,1),4)}, v{T+9}, {SR}, s{so[a]} offen offset:512 {st}")
        for r in range(0, 8, 2):
            g.e(f"v_pk_mul_f32 {vr(A(a,1,0)+r,2)}, {vr(A(a,1,0)+r,2)}, {vr(T+12,2)} op_sel_hi:[1,0]")
        pack(a, 1, 0)
        g.e(f"buffer_store_dwordx4 {vr(D(a,1,0),4)}, v{T+10}, {SR}, s{so[a]} offen {st}")
        stage_wr(a, 1, 0)
    for a in range(2):
        for m in range(2):
            for r in range(0, 8, 2):
                g.e(f"v_pk_mul_f32 {vr(A(a,0,m)+r,2)}, {vr(A(a,0,m)+r,2)}, s[38:39]")
            pack(a, 0, m)
            stage_wr(a, 0, m)
    g.e(f"s_branch {pfx}_wf")
    g.lab(f"{pfx}_wf1")
    for a in range(2):
        for (b, m) in ((0, 1), (1, 0), (1, 1)):
            pack(a, b, m)
            stage_wr(a, b, m)
    for a in range(2):
        pack(a, 0, 0)
        g.e(f"buffer_store_dwordx4 {vr(D(a,0,0),4)}, v{T+9}, {SR}, s{so[a]} offen offset:1536 {st}")
    g.lab(f"{pfx}_wf")
    g.e(f"s_add_u32 s{sT1}, s{sT1}, s{sWV}")
    g.e(f"s_mul_i32 s{sT1}, s{sT1}, {V_KT}")
    g.e(f"s_mul_i32 s{sT0}, s{S_HP}, {2*V_HD}")
    g.e(f"s_add_u32 s{sT0}, s{sT0}, s{sT1}")
    g.e(f"s_add_u32 s{sT0}, s{sT0}, {VF2}")
    g.e(f"s_add_u32 s{sT1}, s{sT0}, {V_HD}")
    g.e("s_waitcnt lgkmcnt(0)")
    g.e("s_barrier")
    VD = FS[1]
    for h in range(2):
        for m in range(2):
            for j in range(2):
                g.e(f"ds_read_b64_tr_b16 {vr(VD+8*h+4*m+2*j,2)}, v{T+14+h} offset:{256*m+128*j}")
    Q16, QR = qdst
    for h in range(2):
        for m in range(2):
            g.e(f"s_waitcnt lgkmcnt({6 - 4*h - 2*m})")
            for q in range(4):
                g.e(f"v_cndmask_b32 v{VD+8*h+4*m+q}, v{VD+8*h+4*m+q}, v{T+17}, s[36:37]")
            g.e(f"buffer_store_dwordx4 {vr(VD+8*h+4*m,4)}, v{T+16}, {SR}, s{sT0+h} offen offset:{768*m} {st}")
    return dict(qa=T + 18)


def g3l_qread(g, qdst):
    T = V_T
    Q16, QR = qdst
    g.e(f"ds_read_b128 {vr(Q16,4)}, v{T+18}")
    g.e(f"ds_read_b128 {vr(Q16+4,4)}, v{T+18} offset:8192")
    g.e(f"ds_read_b128 {vr(Q16+8,4)}, v{T+20}")
    g.e(f"ds_read_b128 {vr(Q16+12,4)}, v{T+20} offset:8192")
    g.e(f"ds_read_b64 {vr(QR,2)}, v{T+19}")
    g.e(f"ds_read_b64 {vr(QR+2,2)}, v{T+21}")
```

```python
from common import *
from sync import *

WB = 64
G4_ACC = 0
OB = [32, 48]
T = 224
L = 240
sTB, sNB, sT0, sT1 = 25, 26, 27, 28


def g4_preload(g, treg):
    S_WO = 12
    sWV = S_WAVE
    g.e(f"s_load_dwordx2 s[40:41], s[0:1], {KA['wo']}")
    g.e(f"s_load_dwordx2 s[42:43], s[0:1], {KA['out']}")
    g.e(f"s_load_dwordx2 s[44:45], s[0:1], {KA['ws']}")
    lane(g, L)
    g.e(f"s_and_b32 s{sT0}, s{S_ROLE}, 7")
    g.e(f"s_and_b32 s{sTB}, s{treg}, 3")
    g.e(f"s_lshr_b32 s{sNB}, s{treg}, 2")
    g.e(f"s_lshl_b32 s{sT0}, s{sT0}, 2")
    g.e(f"s_add_u32 s{sTB}, s{sTB}, s{sT0}")
    g.e(f"v_lshrrev_b32 v{T}, 4, v{L}")
    g.e(f"v_lshlrev_b32 v{T+1}, 2, v{T}")
    g.e(f"v_xor_b32 v{T+1}, v{T+1}, v{L}")
    g.e(f"v_and_b32 v{T+1}, 15, v{T+1}")
    g.e(f"v_lshlrev_b32 v{T+1}, 4, v{T+1}")
    g.e(f"v_mul_u32_u24 v{T}, 1280, v{T}")
    g.e(f"s_mul_i32 s{sT0}, s{sWV}, {16*1280}")
    g.e(f"v_add3_u32 v{T}, v{T}, v{T+1}, s{sT0}")
    for i in range(1, 4):
        g.e(f"v_add_u32 v{T+i}, {i*(4*1280-1024)}, v{T}")
    g.e(f"s_lshl_b32 s{sT0}, s{sNB}, 8")
    g.e(f"s_lshl_b32 s{sT1}, s{sWV}, 12")
    g.e(f"v_bfe_u32 v{T+5}, v{L}, 2, 2")
    g.e(f"v_lshrrev_b32 v{T+6}, 5, v{L}")
    g.e(f"v_lshl_add_u32 v{T+6}, v{T+6}, 3, v{T+5}")
    g.e(f"v_lshlrev_b32 v{T+6}, 8, v{T+6}")
    g.e(f"v_xor_b32 v{T+5}, s{sWV}, v{T+5}")
    g.e(f"v_lshl_add_u32 v{T+6}, v{T+5}, 6, v{T+6}")
    g.e(f"v_and_b32 v{T+5}, 3, v{L}")
    g.e(f"v_bfe_u32 v{T+7}, v{L}, 4, 1")
    g.e(f"v_lshl_add_u32 v{T+5}, v{T+7}, 2, v{T+5}")
    g.e(f"v_lshl_add_u32 v{T+6}, v{T+5}, 3, v{T+6}")
    g.e(f"v_add_u32 v{T+7}, 65536, v{T+6}")
    g.e(f"s_add_u32 s30, s{sT0}, {640*1280}")
    g.e(f"s_mul_i32 s29, s{sNB}, {128*1280}")
    g.e(f"s_add_u32 s29, s29, s{sT0}")
    g.e("s_waitcnt lgkmcnt(0)")
    srd(g, S_WO, 40, 640 * 1280)
    for half in range(2):
        for gi in range(5):
            g.e(f"s_add_u32 m0, s{sT1}, {gi*16384}")
            g.e("s_nop 0")
            for i in range(4):
                g.e(f"buffer_load_dwordx4 v{T+i}, s[{S_WO}:{S_WO+3}], s29 offen offset:{1024*i} lds")
            g.e(f"s_add_u32 s29, s29, {64*1280}")
            g.e("s_cmp_eq_u32 s29, s30")
            g.e(f"s_cselect_b32 s29, s{sT0}, s29")
            g.e("s_waitcnt vmcnt(0)")
        g.e("s_barrier")
        for s in range(20):
            for j in range(2):
                off = 4096 * s + 1024 * j
                g.e(f"ds_read_b64_tr_b16 {vr(WB+4*(20*half+s)+2*j,2)}, v{T+6 if off < 65536 else T+7} offset:{off % 65536}")
            if s % 6 == 5:
                g.e("s_waitcnt lgkmcnt(0)")
        g.e("s_waitcnt lgkmcnt(0)")
        g.e("s_barrier")


def g4_main(g, pfx="g4", pollx=None):
    S_WS, S_OUT = 8, 16
    sWV = S_WAVE
    srd(g, S_WS, 44, WS_USED)
    srd(g, S_OUT, 42, 2048 * 5120)
    g.e(f"s_lshl_b32 s{sT0}, s{sTB}, 1")
    g.e(f"s_lshr_b32 s29, s{sWV}, 1")
    g.e(f"s_add_u32 s{sT0}, s{sT0}, s29")
    g.e(f"s_mul_i32 s{sT1}, s{sT0}, {O_TT}")
    g.e(f"s_add_u32 s{sT1}, s{sT1}, {OF}")
    g.e(f"s_and_b32 s30, s{sWV}, 1")
    g.e(f"s_lshl_b32 s30, s30, 11")
    g.e(f"s_add_u32 s{sT1}, s{sT1}, s30")
    g.e(f"s_mul_i32 s29, s29, 40960")
    g.e("s_add_u32 s29, s29, s30")
    g.e(f"s_lshl_b32 s31, s{sNB}, 13")
    g.e(f"v_lshlrev_b32 v{T+4}, 4, v{L}")
    g.e(f"v_add_u32 v{T+9}, 40960, v{T+4}")
    g.e(f"v_lshrrev_b32 v{T}, 5, v{L}")
    g.e(f"v_mul_u32_u24 v{T}, {4*5120}, v{T}")
    g.e(f"v_and_b32 v{T+1}, 31, v{L}")
    g.e(f"v_lshl_add_u32 v{T}, v{T+1}, 2, v{T}")
    for i in range(1, 4):
        g.e(f"v_add_u32 v{T+i}, {5120*i}, v{T}")
    g.e(f"s_mul_i32 s{sT0}, s{sTB}, {64*5120}")
    g.e(f"s_lshl_b32 s33, s{sNB}, 9")
    g.e(f"s_add_u32 s{sT0}, s{sT0}, s33")
    g.e(f"s_lshl_b32 s33, s{sWV}, 7")
    g.e(f"s_add_u32 s{sT0}, s{sT0}, s33")
    g.e(f"s_add_u32 s{sT0}, s{sT0}, 2560")
    g.e(f"s_cmp_lg_u32 s{sWV}, 0")
    g.e(f"s_cbranch_scc1 {pfx}_wait")
    g.e(f"s_lshr_b32 s33, s{sTB}, 1")
    g.e(f"s_lshl_b32 s33, s33, {FP+4}")
    g.e(f"s_add_u32 s33, s33, {F_O}")
    g.e(f"v_and_b32 v{T+10}, 15, v{L}")
    g.e(f"v_lshlrev_b32 v{T+10}, {FP}, v{T+10}")
    g.e(f"v_add_u32 v{T+10}, s33, v{T+10}")
    poll_flags(g, S_WS, T + 10, T + 11, pfx, sleep=1, mask=False, extra=pollx)
    g.lab(f"{pfx}_wait")
    g.e("s_barrier")
    stamp(g, 7)
    for gi in range(10):
        g.e(f"s_add_u32 m0, s29, {4096*gi}")
        g.e(f"s_add_u32 s32, s{sT1}, s31")
        for i in range(2):
            g.e(f"buffer_load_dwordx4 v{T+4}, s[{S_WS}:{S_WS+3}], s32 offen offset:{1024*i} sc1 lds")
        g.e("s_add_u32 s31, s31, 4096")
        g.e("s_cmp_eq_u32 s31, 40960")
        g.e("s_cselect_b32 s31, 0, s31")
    stamp(g, 10)

    def reads(h, st):
        out = []
        for u in range(2):
            for a in range(2):
                out.append(f"ds_read_b128 {vr(OB[st]+8*u+4*a,4)}, v{T+9 if a else T+4} offset:{1024*(2*h+u)}")
        return out

    g.e("s_waitcnt vmcnt(18)")
    g.e("s_barrier")
    g.e("\n".join(reads(0, 0)))
    for h in range(20):
        st = h & 1
        M = []
        for u in range(2):
            for a in range(2):
                M.append(mfma16(G4_ACC + 16 * a, OB[st] + 8 * u + 4 * a, WB + 4 * (2 * h + u), "0" if (h == 0 and u == 0) else None))
        if h % 2 == 1 and h < 19:
            gi = (h + 1) // 2
            g.e(f"s_waitcnt vmcnt({18 - 2*gi}) lgkmcnt(0)")
            g.e("s_barrier")
        else:
            g.e("s_waitcnt lgkmcnt(0)")
        nxt = reads(h + 1, 1 - st) if h < 19 else []
        g.e("\n".join(interleave(M, [nxt[0:2], nxt[2:4], [], []])))
    g.lab(f"{pfx}_epi")
    stamp(g, 9)
    g.e("s_nop 10")
    for a in range(2):
        for j in range(4):
            for i in range(4):
                g.e(f"buffer_store_dword v{G4_ACC+16*a+4*j+i}, v{T+i}, s[{S_OUT}:{S_OUT+3}], s{sT0} offen")
            g.e(f"s_add_u32 s{sT0}, s{sT0}, {8*5120}")
```

```python
from common import *

SLOT = 16384
NSLOT = 5
EARLY_DMA = True


class Chunk:
    def __init__(self, ndma, dma, reads):
        self.ndma = ndma if callable(ndma) else (lambda stg: ndma)
        self.dma = dma
        self.reads = reads


def gemm_core(g, nst, chA, chB, mfmas, stamps=None, fine=False, after_issue=None, prio=None, at_stage=None, la=4, early=True):
    nch = 2 * nst
    ch = lambda c: chA if c % 2 == 0 else chB
    issued = []

    def issue(c):
        issued.append(c)
        return ch(c).dma(c // 2, c % NSLOT)

    def waitfor(c):
        n = sum(ch(x).ndma(x // 2) for x in issued if x > c)
        return n

    laf = la if callable(la) else (lambda c: la)
    nxt = [0]

    def issue_upto(c):
        out = []
        while nxt[0] <= min(c, nch - 1):
            out.append(issue(nxt[0]))
            nxt[0] += 1
        return out

    for c in range(min(laf(0) + 1, nch)):
        g.e("\n".join(issue_upto(c)[0]))
        if fine and c in (0, 1): stamp(g, 2 + c)
        if c == 1 and after_issue: after_issue()
    if stamps: stamp(g, stamps[0])
    g.e(f"s_waitcnt vmcnt({waitfor(0)})")
    g.e("s_barrier")
    if stamps: stamp(g, stamps[1])
    g.e("\n".join(chA.reads(0, 0, 0)))
    g.e(f"s_waitcnt vmcnt({waitfor(1)}) lgkmcnt(0)")
    g.e("s_barrier")
    if fine: stamp(g, 6)
    g.e("\n".join(chB.reads(0, 1, 0)))
    for d in issue_upto(1 + laf(1)):
        g.e("\n".join(d))
    for s in range(nst):
        if stamps and s == 3 and not fine: stamp(g, stamps[2])
        if at_stage: at_stage(s)
        M = mfmas(s, s & 1)
        h = len(M) // 2
        for half in range(2):
            c = 2 * s + 2 + half
            Mh = M[:h] if half == 0 else M[h:]
            if c < nch:
                g.e(f"s_waitcnt vmcnt({waitfor(c)}) lgkmcnt(0)")
                g.e("s_barrier")
                if fine and c in (3, 5, 7, 9, 11, 13): stamp(g, 7 + (c - 3) // 2)
                rd = ch(c).reads(c // 2, c % NSLOT, (s + 1) & 1)
                dm = [x for d in issue_upto(c + laf(c)) for x in d]
                n = len(Mh)
                fill = [[] for _ in range(n)]
                per = -(-len(rd) // max(1, n - 2))
                k = 0
                for i in range(n):
                    fill[i] += rd[k:k + per]
                    k += per
                for j, ins in enumerate(dm):
                    p = max(0, j - 1) if early else j * n // len(dm)
                    if j == 0:
                        fill[0].insert(0, ins)
                    else:
                        fill[min(n - 1, p)].append(ins)
                g.e("\n".join(interleave(Mh, fill)))
            else:
                if half == 0:
                    g.e("s_waitcnt lgkmcnt(0)")
                g.e("\n".join(Mh))


def lds_off(slot, extra):
    o = slot * SLOT + extra
    if slot == 4:
        return True, o - 4 * SLOT
    return False, o


def direct_dma_voff(g, dst, lane, tmp, tmp2, pitch, nins, wave_rows_s):
    g.e(f"v_lshrrev_b32 v{tmp}, 3, v{lane}")
    g.e(f"v_mul_u32_u24 v{tmp}, {pitch}, v{tmp}")
    g.e(f"v_add_u32 v{tmp}, s{wave_rows_s}, v{tmp}")
    g.e(f"v_lshrrev_b32 v{tmp2}, 4, v{lane}")
    g.e(f"v_xor_b32 v{tmp2}, v{tmp2}, v{lane}")
    g.e(f"v_and_b32 v{tmp2}, 7, v{tmp2}")
    g.e(f"v_lshlrev_b32 v{tmp2}, 4, v{tmp2}")
    for i in range(nins):
        if i % 2 == 0:
            g.e(f"v_add_u32 v{dst+i}, v{tmp}, v{tmp2}")
        else:
            g.e(f"v_xor_b32 v{dst+i}, 64, v{tmp2}")
            g.e(f"v_add_u32 v{dst+i}, v{tmp}, v{dst+i}")
        if i:
            g.e(f"v_add_u32 v{dst+i}, {i*(8*pitch-1024)}, v{dst+i}")


def direct_rd_addr(g, dst, row_v, hl_v, tmp, hi=4*SLOT):
    g.e(f"v_lshrrev_b32 v{tmp}, 1, v{row_v}")
    g.e(f"v_xor_b32 v{tmp}, v{tmp}, v{hl_v}")
    g.e(f"v_and_b32 v{tmp}, 7, v{tmp}")
    g.e(f"v_lshlrev_b32 v{tmp}, 4, v{tmp}")
    g.e(f"v_lshl_add_u32 v{dst}, v{row_v}, 7, v{tmp}")
    for s in range(1, 4):
        g.e(f"v_xor_b32 v{dst+s}, {32*s}, v{dst}")
    for s in range(4):
        g.e(f"v_add_u32 v{dst+4+s}, {hi}, v{dst+s}")


def direct_reads(addr, slot, dst_fn, tiles):
    out = []
    for s in range(4):
        for ti, toff in enumerate(tiles):
            hi, imm = lds_off(slot, toff)
            out.append(f"ds_read_b128 {vr(dst_fn(ti, s), 4)}, v{addr + s + (4 if hi else 0)} offset:{imm}")
    return out


def gemm_core1(g, nst, ch, mfmas, nslot=3, after_issue=None, la=3, early=True):
    issued = []

    def issue(c):
        issued.append(c)
        return ch.dma(c, c % nslot)

    def waitfor(c):
        return sum(ch.ndma(x) for x in issued if x > c)

    for c in range(min(la, nst)):
        g.e("\n".join(issue(c)))
        if c == 0 and after_issue: after_issue()
    g.e(f"s_waitcnt vmcnt({waitfor(0)})")
    g.e("s_barrier")
    g.e("\n".join(ch.reads(0, 0, 0)))
    for s in range(nst):
        M = mfmas(s, s & 1)
        n = len(M)
        if s + 1 < nst:
            g.e(f"s_waitcnt vmcnt({waitfor(s + 1)}) lgkmcnt(0)")
            g.e("s_barrier")
            rd = ch.reads(s + 1, (s + 1) % nslot, (s + 1) & 1)
            dm = issue(s + la) if s + la < nst else []
            fill = [[] for _ in range(n)]
            per = -(-len(rd) // max(1, n - 2))
            k = 0
            for i in range(n):
                fill[i] += rd[k:k + per]
                k += per
            for j, ins in enumerate(dm):
                p = min(n - 1, (j + 1) // 2 if early else j)
                fill[p].insert(len([1 for x in fill[p] if "buffer_load" in x or "m0" in x]), ins)
            g.e("\n".join(interleave(M, fill)))
        else:
            g.e("s_waitcnt lgkmcnt(0)")
            g.e("\n".join(M))
```

```python
from common import *


def code_prefetch(g, base_label, nbytes, idreg, vt, st=4, end_label=None):
    per = -(-nbytes // (32 * 128))
    assert per <= 64
    g.e(f"s_getpc_b64 s[{st}:{st+1}]")
    lab = f"cpf_{base_label}_{len(g.L)}"
    g.lab(lab)
    g.e(f"s_sub_u32 s{st}, s{st}, {lab}-{base_label}")
    g.e(f"s_subb_u32 s{st+1}, s{st+1}, 0")
    g.e(f"s_bfe_u32 s{st+2}, s{idreg}, 0x50003")
    g.e(f"s_mul_i32 s{st+2}, s{st+2}, {per*128}")
    g.e(f"v_and_b32 v{vt}, 63, v0")
    g.e(f"v_min_u32 v{vt}, {per-1}, v{vt}")
    g.e(f"v_lshlrev_b32 v{vt}, 7, v{vt}")
    g.e(f"v_add_u32 v{vt}, s{st+2}, v{vt}")
    g.e(f"v_min_u32 v{vt}, {end_label}-{base_label}-4, v{vt}" if end_label else f"v_min_u32 v{vt}, {nbytes-4}, v{vt}")
    g.e(f"global_load_dword v{vt+1}, v{vt}, s[{st}:{st+1}]")


def chip_prefetch(g, names_sizes, jreg, vt, st=40, flags=""):
    for i, (n, sz) in enumerate(names_sizes):
        g.e(f"s_load_dwordx2 s[{st+2*i}:{st+2*i+1}], s[0:1], {KA[n]}")
    g.e(f"v_lshrrev_b32 v{vt}, 6, v0")
    g.e(f"v_lshl_add_u32 v{vt}, s{jreg}, 2, v{vt}")
    g.e(f"v_and_b32 v{vt+1}, 63, v0")
    g.e("s_waitcnt lgkmcnt(0)")
    for i, (n, sz) in enumerate(names_sizes):
        lines = sz // 128
        per = -(-lines // 1024)
        g.e(f"v_min_u32 v{vt+2}, {per-1}, v{vt+1}")
        g.e(f"v_mad_u32_u24 v{vt+2}, v{vt}, {per}, v{vt+2}")
        g.e(f"v_min_u32 v{vt+2}, {lines-1}, v{vt+2}")
        g.e(f"v_lshlrev_b32 v{vt+2}, 7, v{vt+2}")
        g.e(f"global_load_dword v{vt+3+i}, v{vt+2}, s[{st+2*i}:{st+2*i+1}] {flags}")


def xcd_prefetch_g3(g, jreg, vt, st=40):
    g.e(f"s_load_dwordx4 s[{st}:{st+3}], s[0:1], {KA['B_x']}")
    g.e(f"s_and_b32 s{st+4}, s{jreg}, 7")
    g.e(f"s_lshr_b32 s{st+5}, s{jreg}, 3")
    g.e(f"v_lshrrev_b32 v{vt}, 6, v0")
    g.e(f"v_lshl_add_u32 v{vt}, s{st+5}, 2, v{vt}")
    g.e(f"v_and_b32 v{vt+1}, 63, v0")
    g.e(f"v_min_u32 v{vt+2}, 39, v{vt+1}")
    g.e(f"v_mad_u32_u24 v{vt+2}, v{vt}, 40, v{vt+2}")
    g.e(f"v_lshlrev_b32 v{vt+2}, 7, v{vt+2}")
    g.e(f"s_lshr_b32 s{st+6}, s{st+4}, 1")
    g.e(f"s_mul_i32 s{st+6}, s{st+6}, {512*1280}")
    g.e(f"v_add_u32 v{vt+2}, s{st+6}, v{vt+2}")
    g.e(f"s_and_b32 s{st+6}, s{st+4}, 1")
    g.e(f"s_mul_i32 s{st+6}, s{st+6}, 1792")
    g.e(f"v_mul_u32_u24 v{vt+3}, {5*3840}, v{vt}")
    g.e(f"v_add_u32 v{vt+3}, s{st+6}, v{vt+3}")
    g.e(f"v_lshrrev_b32 v{vt+4}, 4, v{vt+1}")
    g.e(f"v_mul_u32_u24 v{vt+4}, 3840, v{vt+4}")
    g.e(f"v_and_b32 v{vt+5}, 15, v{vt+1}")
    g.e(f"v_lshl_add_u32 v{vt+4}, v{vt+5}, 7, v{vt+4}")
    g.e(f"v_add_u32 v{vt+4}, v{vt+4}, v{vt+3}")
    g.e(f"v_lshl_add_u32 v{vt+5}, v{vt+5}, 7, v{vt+3}")
    g.e(f"v_add_u32 v{vt+5}, {4*3840}, v{vt+5}")
    g.e("s_waitcnt lgkmcnt(0)")
    g.e(f"global_load_dword v{vt+6}, v{vt+4}, s[{st+2}:{st+3}]")
    g.e(f"global_load_dword v{vt+7}, v{vt+2}, s[{st}:{st+1}]")
    g.e(f"global_load_dword v{vt+8}, v{vt+5}, s[{st+2}:{st+3}]")


def kord_prefetch_g3(g, jreg, vt, s0=2, ng=3, st=40, fl="", pfx="kpf"):
    g.e(f"s_load_dwordx4 s[{st}:{st+3}], s[0:1], {KA['B_x']}")
    g.e(f"v_lshrrev_b32 v{vt}, 6, v0")
    g.e(f"v_and_b32 v{vt+1}, 63, v0")
    g.e(f"v_readfirstlane_b32 s{st+6}, v{vt}")
    g.e(f"s_and_b32 s{st+4}, s{jreg}, 7")
    g.e(f"s_lshr_b32 s{st+5}, s{jreg}, 3")
    g.e(f"s_lshl_b32 s{st+6}, s{st+6}, 5")
    g.e(f"s_add_u32 s{st+5}, s{st+5}, s{st+6}")
    g.e(f"s_cmp_ge_u32 s{st+5}, {24*ng}")
    g.e(f"s_cbranch_scc1 {pfx}_end")
    g.e(f"s_mul_i32 s{st+6}, s{st+5}, 2731")
    g.e(f"s_lshr_b32 s{st+6}, s{st+6}, 16")
    g.e(f"s_mul_i32 s{st+7}, s{st+6}, 24")
    g.e(f"s_sub_u32 s{st+5}, s{st+5}, s{st+7}")
    g.e(f"s_add_u32 s{st+6}, s{st+6}, {s0}")
    g.e(f"s_lshr_b32 s{st+7}, s{st+4}, 1")
    g.e(f"s_lshl_b32 s{st+7}, s{st+7}, 3")
    g.e(f"s_add_u32 s{st+7}, s{st+7}, s{st+5}")
    g.e(f"s_lshl_b32 s{st+7}, s{st+7}, 6")
    g.e(f"v_add_u32 v{vt+2}, s{st+7}, v{vt+1}")
    g.e(f"v_mul_u32_u24 v{vt+2}, 1280, v{vt+2}")
    g.e(f"s_sub_u32 s{st+7}, s{st+5}, 8")
    g.e(f"s_lshl_b32 s{st+7}, s{st+7}, 2")
    g.e(f"v_lshrrev_b32 v{vt+3}, 4, v{vt+1}")
    g.e(f"v_add_u32 v{vt+3}, s{st+7}, v{vt+3}")
    g.e(f"v_mul_u32_u24 v{vt+3}, 3840, v{vt+3}")
    g.e(f"v_and_b32 v{vt+4}, 15, v{vt+1}")
    g.e(f"v_lshl_add_u32 v{vt+3}, v{vt+4}, 7, v{vt+3}")
    g.e(f"s_and_b32 s{st+7}, s{st+4}, 1")
    g.e(f"s_mul_i32 s{st+7}, s{st+7}, 1792")
    g.e(f"v_add_u32 v{vt+3}, s{st+7}, v{vt+3}")
    g.e(f"s_cmp_lt_u32 s{st+5}, 8")
    g.e(f"s_cselect_b64 vcc, -1, 0")
    g.e(f"s_mov_b32 s{st+8}, {64*3840}")
    g.e(f"s_cselect_b32 s{st+8}, 128, s{st+8}")
    g.e(f"v_cndmask_b32 v{vt+2}, v{vt+3}, v{vt+2}, vcc")
    g.e("s_waitcnt lgkmcnt(0)")
    g.e(f"s_cselect_b32 s{st+10}, s{st}, s{st+2}")
    g.e(f"s_cselect_b32 s{st+11}, s{st+1}, s{st+3}")
    g.e(f"s_mul_i32 s{st+9}, s{st+6}, s{st+8}")
    g.e(f"v_add_u32 v{vt+2}, s{st+9}, v{vt+2}")
    g.e(f"s_mul_i32 s{st+8}, s{st+8}, {ng}")
    g.lab(f"{pfx}_loop")
    g.e(f"global_load_dword v{vt+5}, v{vt+2}, s[{st+10}:{st+11}] {fl}")
    g.e(f"s_add_u32 s{st+6}, s{st+6}, {ng}")
    g.e(f"v_add_u32 v{vt+2}, s{st+8}, v{vt+2}")
    g.e("s_waitcnt vmcnt(0)")
    g.e(f"s_cmp_lt_u32 s{st+6}, 10")
    g.e(f"s_cbranch_scc1 {pfx}_loop")
    g.lab(f"{pfx}_end")


def gentle_l2_prefetch(g, names, nlines, widx_s, nw, vt, st=40, pfx="gpf", fl=""):
    for i, n in enumerate(names):
        g.e(f"s_load_dwordx2 s[{st+2*i}:{st+2*i+1}], s[0:1], {KA[n]}")
    g.e(f"v_mbcnt_lo_u32_b32 v{vt}, -1, 0")
    g.e(f"v_mbcnt_hi_u32_b32 v{vt}, -1, v{vt}")
    g.e(f"s_lshl_b32 s{st+10}, s{widx_s}, 6")
    g.e(f"v_add_u32 v{vt}, s{st+10}, v{vt}")
    g.e(f"v_lshlrev_b32 v{vt}, 7, v{vt}")
    g.e("s_waitcnt lgkmcnt(0)")
    for i, n in enumerate(names):
        steps = -(-nlines // (64 * nw))
        for k in range(steps):
            g.e(f"v_add_u32 v{vt+1}, {k*64*nw*128}, v{vt}")
            g.e(f"v_min_u32 v{vt+1}, {(nlines-1)*128}, v{vt+1}")
            g.e(f"global_load_dword v{vt+2}, v{vt+1}, s[{st+2*i}:{st+2*i+1}] {fl}")
            g.e("s_waitcnt vmcnt(0)")


def scalar_mall_prefetch(g, names_sizes, widx_s, nw, st=40, pfx="smp"):
    for i, (n, sz) in enumerate(names_sizes):
        lines = sz // 128
        per = -(-lines // nw)
        assert per * nw == lines or True
        g.e(f"s_load_dwordx2 s[{st}:{st+1}], s[0:1], {KA[n]}")
        g.e(f"s_mul_i32 s{st+2}, s{widx_s}, {per*128}")
        g.e(f"s_min_u32 s{st+2}, s{st+2}, {sz - per*128}")
        g.e("s_waitcnt lgkmcnt(0)")
        g.e(f"s_add_u32 s{st}, s{st}, s{st+2}")
        g.e(f"s_addc_u32 s{st+1}, s{st+1}, 0")
        for k in range(per):
            g.e(f"s_load_dword s{st+4+(k % 12)}, s[{st}:{st+1}], {128*k}")
        g.e("s_waitcnt lgkmcnt(0)")


def code_prefetch_range(g, lab0, lab1, nbytes, vt, st=4):
    g.e(f"s_getpc_b64 s[{st}:{st+1}]")
    lab = f"cpr_{len(g.L)}"
    g.lab(lab)
    g.e(f"s_add_u32 s{st}, s{st}, {lab0}-{lab}")
    g.e(f"s_addc_u32 s{st+1}, s{st+1}, 0")
    g.e(f"v_mbcnt_lo_u32_b32 v{vt}, -1, 0")
    g.e(f"v_mbcnt_hi_u32_b32 v{vt}, -1, v{vt}")
    g.e(f"v_lshlrev_b32 v{vt}, 7, v{vt}")
    for k in range(-(-nbytes // 8192)):
        if k:
            g.e(f"v_add_u32 v{vt}, 8192, v{vt}")
        g.e(f"v_min_u32 v{vt+1}, {lab1}-{lab0}-4, v{vt}")
        g.e(f"global_load_dword v{vt+2}, v{vt+1}, s[{st}:{st+1}]")


def code_refresh_setup(g, base_label, end_label, slice_s, per, va, st):
    g.e(f"s_getpc_b64 s[{st}:{st+1}]")
    lab = f"crs_{len(g.L)}"
    g.lab(lab)
    g.e(f"s_sub_u32 s{st}, s{st}, {lab}-{base_label}")
    g.e(f"s_subb_u32 s{st+1}, s{st+1}, 0")
    g.e(f"v_mbcnt_lo_u32_b32 v{va}, -1, 0")
    g.e(f"v_mbcnt_hi_u32_b32 v{va}, -1, v{va}")
    g.e(f"v_min_u32 v{va}, {per-1}, v{va}")
    g.e(f"s_mul_i32 s4, s{slice_s}, {per}")
    g.e(f"v_add_u32 v{va}, s4, v{va}")
    g.e(f"v_lshlrev_b32 v{va}, 7, v{va}")
    g.e(f"v_min_u32 v{va}, {end_label}-{base_label}-4, v{va}")
    return f"global_load_dword v{va+1}, v{va}, s[{st}:{st+1}] sc1"
```

```python
from common import *
from gemm import *
from g3 import f32hex
from sync import *

ACC = 64
FS = [128, 192]
V_XD = 1
V_YD = 5
V_XA = 10
V_YA = 18
V_LANE = 26
V_CH = 27
PW = 28
C2 = 44
L128 = 46
V_T = 48
LOG2E = 1.4426950408889634


def cmul(g, dr, di, ar, ai, br, bi, t):
    g.e(f"v_mul_f32 v{t}, v{ai}, v{bi}")
    g.e(f"v_fma_f32 v{t}, v{ar}, v{br}, -v{t}")
    g.e(f"v_mul_f32 v{t+1}, v{ar}, v{bi}")
    g.e(f"v_fma_f32 v{di}, v{ai}, v{br}, v{t+1}")
    g.e(f"v_mov_b32 v{dr}, v{t}")


def tile_decode(g, treg, sC, sCB, sT0):
    g.e(f"s_and_b32 s{sT0}, s{S_ROLE}, 7")
    g.e(f"s_and_b32 s{sC}, s{treg}, 1")
    g.e(f"s_lshr_b32 s{sCB}, s{treg}, 1")
    g.e(f"s_lshl_b32 s{sT0}, s{sT0}, 1")
    g.e(f"s_add_u32 s{sC}, s{sC}, s{sT0}")


def set_ch(g, sCB, sWC, sT0, sT1, T):
    g.e(f"v_and_b32 v{T}, 31, v{V_LANE}")
    g.e(f"s_lshl_b32 s{sT0}, s{sCB}, 6")
    g.e(f"s_lshl_b32 s{sT1}, s{sWC}, 5")
    g.e(f"s_add_u32 s{sT0}, s{sT0}, s{sT1}")
    g.e(f"v_add_u32 v{V_CH}, s{sT0}, v{T}")


def g1(g, treg, pfx="g1", prio=(0, 0), trig=None, nt="", local=True, post=None, la=4, earlyd=True, dbg=""):
    LAM = PW
    L8 = PW + 14
    early = trig is None
    S_X, S_Y, S_WS = 8, 12, 16
    sC, sCB, sXO, sXB, sXE, sYO, sYB, sYE, sM0, sT0, sT1, sWT, sWC = range(25, 38)
    sWV = S_WAVE
    L, T = V_LANE, V_T
    g.e(f"s_load_dwordx2 s[40:41], s[0:1], {KA['A_x']}")
    g.e(f"s_load_dwordx4 s[44:47], s[0:1], {KA['B_re']}")
    g.e(f"s_load_dwordx4 s[48:51], s[0:1], {KA['Lre']}")
    g.e(f"s_load_dwordx2 s[52:53], s[0:1], {KA['log_dt']}")
    g.e(f"s_load_dwordx2 s[62:63], s[0:1], {KA['ws']}")
    lane(g, L)
    tile_decode(g, treg, sC, sCB, sT0)
    g.e(f"s_lshr_b32 s{sWT}, s{sWV}, 1")
    g.e(f"s_and_b32 s{sWC}, s{sWV}, 1")
    g.e(f"s_and_b32 s{sT1}, s{sC}, 1")
    g.e(f"s_mul_i32 s{sT1}, s{sT1}, 5")
    g.e(f"s_add_u32 s{sT1}, s{sT1}, s{sCB}")
    g.e(f"s_cmp_ge_u32 s{sT1}, 10")
    g.e(f"s_cselect_b32 s{sT0}, 10, 0")
    g.e(f"s_sub_u32 s{sT1}, s{sT1}, s{sT0}")
    g.e(f"s_lshl_b32 s{sT1}, s{sT1}, 7")
    g.e(f"s_mul_i32 s{sXB}, s{sC}, {128*1280}")
    g.e(f"s_add_u32 s{sXE}, s{sXB}, 1280")
    g.e(f"s_add_u32 s{sXO}, s{sXB}, s{sT1}")
    g.e(f"s_mul_i32 s{sYB}, s{sCB}, {64*1280}")
    g.e(f"s_add_u32 s{sYE}, s{sYB}, 1280")
    g.e(f"s_add_u32 s{sYO}, s{sYB}, s{sT1}")
    g.e(f"s_lshl_b32 s{sM0}, s{sWV}, 12")
    g.e(f"s_mul_i32 s{sT0}, s{sWV}, {32*1280}")
    direct_dma_voff(g, V_XD, L, T, T + 1, 1280, 4, sT0)
    g.e(f"s_mul_i32 s{sT0}, s{sWC}, {32*1280}")
    direct_dma_voff(g, V_YD, L, T, T + 1, 1280, 4, sT0)
    set_ch(g, sCB, sWC, sT0, sT1, T)
    g.e(f"v_lshlrev_b32 v{T+1}, 1, v{V_CH}")
    g.e("s_waitcnt lgkmcnt(0)")
    LR, LI = T + 8, T + 9
    g.e(f"v_mov_b32 v{T+11}, v{T+1}")

    def param_loads():
        g.e(f"global_load_ushort v{LR}, v{T+11}, s[48:49]")
        g.e(f"global_load_ushort v{LI}, v{T+11}, s[50:51]")
        g.e(f"global_load_ushort v{T+10}, v{T+11}, s[52:53]")
    if not early:
        param_loads()
    srd(g, S_X, 40, 2048 * 1280)
    g.e(f"s_cmp_eq_u32 s{sWT}, 0")
    g.e("s_cselect_b32 s42, s44, s46")
    g.e("s_cselect_b32 s43, s45, s47")
    srd(g, S_Y, 42, 640 * 1280)
    srd(g, S_WS, 62, WS_USED)
    def after_issue():
        g.e(f"v_bfe_u32 v{T+1}, v{L}, 2, 1")
        g.e(f"v_lshlrev_b32 v{T+1}, 4, v{T+1}")
        g.e(f"v_and_b32 v{T+2}, 1, v{L}")
        g.e(f"v_lshl_add_u32 v{T+1}, v{T+2}, 3, v{T+1}")
        g.e(f"v_bfe_u32 v{T+2}, v{L}, 3, 2")
        g.e(f"v_lshl_add_u32 v{T+1}, v{T+2}, 1, v{T+1}")
        g.e(f"v_bfe_u32 v{T+2}, v{L}, 1, 1")
        g.e(f"v_add_u32 v{T+1}, v{T+1}, v{T+2}")
        g.e(f"s_lshl_b32 s{sT0}, s{sWT}, 6")
        g.e(f"v_add_u32 v{T+1}, s{sT0}, v{T+1}")
        g.e(f"v_lshrrev_b32 v{T+2}, 5, v{L}")
        direct_rd_addr(g, V_XA, T + 1, T + 2, T + 3)
        g.e(f"v_add_u32 v{T+1}, s{sT1}, v{T}")
        direct_rd_addr(g, V_YA, T + 1, T + 2, T + 3)
        if early:
            param_loads()

    def params():
        if not early:
            g.e("s_waitcnt vmcnt(0)")
        g.e(f"v_lshlrev_b32 v{LR}, 16, v{LR}")
        g.e(f"v_lshlrev_b32 v{LI}, 16, v{LI}")
        g.e(f"v_lshlrev_b32 v{T}, 16, v{T+10}")
        g.e(f"v_mul_f32 v{T}, {f32hex(LOG2E)}, v{T}")
        g.e(f"v_exp_f32 v{T}, v{T}")
        g.e("s_nop 0")
        g.e(f"v_cvt_pk_bf16_f32 v{T}, v{T}, v{T}")
        g.e(f"v_lshlrev_b32 v{T}, 16, v{T}")
        g.e(f"v_mul_f32 v{T+1}, v{T}, v{LR}")
        g.e(f"v_mul_f32 v{T+2}, v{T}, v{LI}")
        g.e(f"v_mul_f32 v{T+1}, {f32hex(LOG2E)}, v{T+1}")
        g.e(f"v_mul_f32 v{T+2}, 0.15915494, v{T+2}")
        g.e(f"v_exp_f32 v{T+1}, v{T+1}")
        g.e(f"v_fract_f32 v{T+2}, v{T+2}")
        g.e(f"v_cos_f32 v{T+3}, v{T+2}")
        g.e(f"v_sin_f32 v{T+4}, v{T+2}")
        g.e("s_nop 0")
        g.e(f"v_mul_f32 v{LAM}, v{T+1}, v{T+3}")
        g.e(f"v_mul_f32 v{LAM+1}, v{T+1}, v{T+4}")
        g.e(f"v_mul_f32 v{T}, v{LR}, v{LR}")
        g.e(f"v_fma_f32 v{T}, v{LI}, v{LI}, v{T}")
        g.e(f"v_rcp_f32 v{T}, v{T}")
        g.e(f"v_add_f32 v{T+1}, -1.0, v{LAM}")
        g.e(f"v_mul_f32 v{T+2}, v{T+1}, v{LR}")
        g.e(f"v_fma_f32 v{T+2}, v{LAM+1}, v{LI}, v{T+2}")
        g.e(f"v_mul_f32 v{T+3}, v{T+1}, v{LI}")
        g.e(f"v_fma_f32 v{T+3}, v{LAM+1}, v{LR}, -v{T+3}")
        g.e(f"v_add_f32 v{T}, v{T}, v{T}")
        g.e(f"v_mul_f32 v{C2}, v{T+2}, v{T}")
        g.e(f"v_mul_f32 v{C2+1}, v{T+3}, v{T}")
        for k in range(1, 8):
            if k % 2 == 1:
                h = (k + 1) // 2 - 1
                cmul(g, PW + 2 * k, PW + 2 * k + 1, PW + 2 * h, PW + 2 * h + 1, PW + 2 * h, PW + 2 * h + 1, T)
            else:
                cmul(g, PW + 2 * k, PW + 2 * k + 1, PW + 2 * (k - 1), PW + 2 * (k - 1) + 1, LAM, LAM + 1, T)
        cmul(g, L128, L128 + 1, L8, L8 + 1, L8, L8 + 1, T)
        for _ in range(3):
            cmul(g, L128, L128 + 1, L128, L128 + 1, L128, L128 + 1, T)

    if trig is not None:
        after_issue()
        params()
        trig(S_WS, T)
    stamp(g, 1)
    g.e(f"s_setprio {prio[0]}")

    def mkdma(vd, S, so, sb, se):
        def f(stage, slot):
            o = [f"s_add_u32 m0, s{sM0}, {slot*SLOT}\ns_nop 0"]
            for i in range(4):
                o.append(f"buffer_load_dwordx4 v{vd+i}, s[{S}:{S+3}], {'0' if 'warm' in dbg else 's%d' % so} offen offset:{1024*i} {nt} lds")
            if "nodma" in dbg:
                o = [o[0]] + ["s_nop 0"] * 4
            o[-1] += f"\ns_add_u32 s{so}, s{so}, 128\ns_cmp_eq_u32 s{so}, s{se}\ns_cselect_b32 s{so}, s{sb}, s{so}"
            return o
        return f

    def xreads(stage, slot, st):
        if "nord" in dbg: return []
        return direct_reads(V_XA, slot, lambda ti, s: FS[st] + 4 * (2 * s + ti), [0, 4096])

    def yreads(stage, slot, st):
        if "nord" in dbg: return []
        return direct_reads(V_YA, slot, lambda ti, s: FS[st] + 32 + 4 * (2 * s + ti), [0, 8192])

    def mf1(s, st):
        out = []
        for ks in range(4):
            for a in range(2):
                for b in range(2):
                    out.append(mfma16(ACC + 16 * (2 * a + b), FS[st] + 4 * (2 * ks + a), FS[st] + 32 + 4 * (2 * ks + b),
                                      "0" if (s == 0 and ks == 0) else None))
        return out if "nomf" not in dbg else ["s_nop 15\ns_nop 7"] * 16

    gemm_core(g, 10, Chunk(4, mkdma(V_XD, S_X, sXO, sXB, sXE), xreads), Chunk(4, mkdma(V_YD, S_Y, sYO, sYB, sYE), yreads), mf1,
              after_issue=after_issue if early else None, la=la, early=earlyd)
    stamp(g, 2)
    g.e(f"s_setprio {prio[1]}")
    if post is not None:
        post()
    if early:
        params()
    EA = T + 4
    g.e(f"v_lshrrev_b32 v{T+6}, 5, v{L}")
    g.e(f"s_lshl_b32 s{sT0}, s{sWT}, 2")
    g.e(f"v_add_u32 v{T+6}, s{sT0}, v{T+6}")
    g.e(f"v_and_b32 v{T+5}, 63, v{V_CH}")
    g.e(f"v_lshlrev_b32 v{T+5}, 3, v{T+5}")
    g.e(f"v_lshl_add_u32 v{EA}, v{T+6}, 9, v{T+5}")
    g.e("s_nop 6")
    if "noscan" in dbg:
        e0 = g.e
        g.e = lambda x: None if (x.startswith("v_pk_") or x.startswith("v_fma") or x.startswith("v_cvt_pk") or x.startswith("v_mul_f32") or x.startswith("v_add_f32")) else e0(x)
    RE = lambda a, k: ACC + 32 * a + 2 * k
    IM = lambda a, k: ACC + 32 * a + 16 + 2 * k
    for k in range(8):
        for a in range(2):
            t = T + 2 * a
            g.e(f"v_pk_mul_f32 {vr(t,2)}, {vr(C2,2)}, {vr(IM(a,k),2)} op_sel:[1,0] op_sel_hi:[1,1]")
            g.e(f"v_pk_mul_f32 {vr(IM(a,k),2)}, {vr(C2,2)}, {vr(IM(a,k),2)} op_sel_hi:[0,1]")
            g.e(f"v_pk_fma_f32 {vr(IM(a,k),2)}, {vr(C2,2)}, {vr(RE(a,k),2)}, {vr(IM(a,k),2)} op_sel:[1,0,0] op_sel_hi:[1,1,1]")
            g.e(f"v_pk_fma_f32 {vr(RE(a,k),2)}, {vr(C2,2)}, {vr(RE(a,k),2)}, {vr(t,2)} op_sel_hi:[0,1,1] neg_lo:[0,0,1] neg_hi:[0,0,1]")
    for k in range(1, 8):
        for a in range(2):
            g.e(f"v_pk_fma_f32 {vr(RE(a,k),2)}, {vr(LAM,2)}, {vr(RE(a,k-1),2)}, {vr(RE(a,k),2)} op_sel_hi:[0,1,1]")
            g.e(f"v_pk_fma_f32 {vr(IM(a,k),2)}, {vr(LAM,2)}, {vr(IM(a,k-1),2)}, {vr(IM(a,k),2)} op_sel_hi:[0,1,1]")
        for a in range(2):
            g.e(f"v_pk_fma_f32 {vr(RE(a,k),2)}, {vr(LAM,2)}, {vr(IM(a,k-1),2)}, {vr(RE(a,k),2)} op_sel:[1,0,0] op_sel_hi:[1,1,1] neg_lo:[1,0,0] neg_hi:[1,0,0]")
            g.e(f"v_pk_fma_f32 {vr(IM(a,k),2)}, {vr(LAM,2)}, {vr(RE(a,k-1),2)}, {vr(IM(a,k),2)} op_sel:[1,0,0] op_sel_hi:[1,1,1]")
    g.e("s_barrier")
    for a in range(2):
        g.e(f"ds_write_b64 v{EA}, {vr(RE(a,7),2)} offset:{1024*a}")
        g.e(f"ds_write_b64 v{EA}, {vr(IM(a,7),2)} offset:{4096+1024*a}")
    g.e("s_waitcnt lgkmcnt(0)")
    g.e("s_barrier")
    g.e(f"s_cmp_lg_u32 s{sWT}, 0")
    g.e(f"s_cbranch_scc1 {pfx}_wait2")
    ER, EI = FS[0], FS[0] + 16
    for sp in range(8):
        g.e(f"ds_read_b64 {vr(ER+2*sp,2)}, v{T+5} offset:{512*sp}")
        g.e(f"ds_read_b64 {vr(EI+2*sp,2)}, v{T+5} offset:{4096+512*sp}")
    g.e("s_waitcnt lgkmcnt(0)")
    YR, YI = FS[1], FS[1] + 18
    g.e(f"v_mov_b32 v{YR}, 0")
    g.e(f"v_mov_b32 v{YI}, 0")
    g.e(f"v_mov_b32 v{YR+1}, v{ER}")
    g.e(f"v_mov_b32 v{YI+1}, v{EI}")
    for s in range(1, 16):
        g.e(f"v_fma_f32 v{YR+s+1}, v{L8}, v{YR+s}, v{ER+s}")
        g.e(f"v_fma_f32 v{YI+s+1}, v{L8}, v{YI+s}, v{EI+s}")
        g.e(f"v_fma_f32 v{YR+s+1}, -v{L8+1}, v{YI+s}, v{YR+s+1}")
        g.e(f"v_fma_f32 v{YI+s+1}, v{L8+1}, v{YR+s}, v{YI+s+1}")
    GR = FS[1] + 36
    g.e(f"v_mov_b32 v{GR}, v{YR+16}")
    g.e(f"v_mov_b32 v{GR+1}, s{S_NONCE}")
    g.e(f"v_mov_b32 v{GR+2}, v{YI+16}")
    g.e(f"v_mov_b32 v{GR+3}, s{S_NONCE}")
    g.e(f"v_lshlrev_b32 v{T+2}, 4, v{V_CH}")
    g.e(f"s_mul_i32 s{sXO}, s{sC}, 10240")
    g.e(f"s_add_u32 s{sXO}, s{sXO}, {AGG}")
    g.e(f"buffer_store_dwordx4 {vr(GR,4)}, v{T+2}, s[{S_WS}:{S_WS+3}], s{sXO} offen sc1")
    LB = FS[0]
    for j in range(15):
        g.e(f"v_mov_b32 v{LB+4*j}, 0")
        g.e(f"v_mov_b32 v{LB+4*j+1}, s{S_NONCE}")
        g.e(f"v_mov_b32 v{LB+4*j+2}, 0")
        g.e(f"v_mov_b32 v{LB+4*j+3}, s{S_NONCE}")
    g.e(f"s_mov_b32 s67, {SPIN_MAX}")
    g.lab(f"{pfx}_lb")
    g.e(f"s_mov_b32 s{sT1}, s{sXO}")
    for j in range(1, 16):
        g.e(f"s_cmp_lt_u32 s{sC}, {j}")
        g.e(f"s_cbranch_scc1 {pfx}_lb_done")
        g.e(f"s_sub_u32 s{sT1}, s{sT1}, 10240")
        g.e(f"buffer_load_dwordx4 {vr(LB+4*(15-j),4)}, v{T+2}, s[{S_WS}:{S_WS+3}], s{sT1} offen sc1")
    g.lab(f"{pfx}_lb_done")
    g.e("s_waitcnt vmcnt(0)")
    g.e(f"v_mov_b32 v{T}, s{S_NONCE}")
    g.e(f"v_mov_b32 v{T+1}, s{S_NONCE}")
    for j in range(15):
        g.e(f"v_min3_u32 v{T}, v{LB+4*j+1}, v{LB+4*j+3}, v{T}")
        g.e(f"v_max3_u32 v{T+1}, v{LB+4*j+1}, v{LB+4*j+3}, v{T+1}")
    g.e(f"v_cmp_ne_u32 vcc, v{T}, v{T+1}")
    g.e("s_nop 4")
    g.e(f"s_cbranch_vccz {pfx}_lb_ok")
    g.e("s_sleep 4")
    g.e("s_sub_u32 s67, s67, 1")
    g.e("s_cmp_lg_u32 s67, 0")
    g.e(f"s_cbranch_scc1 {pfx}_lb")
    g.lab(f"{pfx}_lb_ok")
    for j in range(1, 15):
        a0, a1 = LB + 4 * (j - 1), LB + 4 * j
        g.e(f"v_fma_f32 v{a1}, v{L128}, v{a0}, v{a1}")
        g.e(f"v_fma_f32 v{a1+2}, v{L128}, v{a0+2}, v{a1+2}")
        g.e(f"v_fma_f32 v{a1}, -v{L128+1}, v{a0+2}, v{a1}")
        g.e(f"v_fma_f32 v{a1+2}, v{L128+1}, v{a0}, v{a1+2}")
    WR, WI = LB + 56, LB + 58
    for s in range(16):
        g.e(f"v_add_f32 v{YR+s}, v{YR+s}, v{WR}")
        g.e(f"v_add_f32 v{YI+s}, v{YI+s}, v{WI}")
        if s < 15:
            g.e(f"v_mul_f32 v{T}, v{L8+1}, v{WI}")
            g.e(f"v_mul_f32 v{T+1}, v{L8+1}, v{WR}")
            g.e(f"v_fma_f32 v{WR}, v{L8}, v{WR}, -v{T}")
            g.e(f"v_fma_f32 v{WI}, v{L8}, v{WI}, v{T+1}")
    for sp in range(8):
        g.e(f"ds_write_b64 v{T+5}, {vr(YR+2*sp,2)} offset:{8192+512*sp}")
        g.e(f"ds_write_b64 v{T+5}, {vr(YI+2*sp,2)} offset:{12288+512*sp}")
    g.e("s_waitcnt lgkmcnt(0)")
    g.lab(f"{pfx}_wait2")
    g.e("s_barrier")
    stamp(g, 3)
    hst = "" if local else "sc1"
    if local:
        g.e(f"v_min_u32 v{T+6}, 9, v{L}")
        g.e(f"v_lshlrev_b32 v{T+6}, {FP}, v{T+6}")
        g.e(f"s_lshl_b32 s{sT0}, s{sC}, {FP+4}")
        g.e(f"s_add_u32 s{sT0}, s{sT0}, {F_CA}")
        g.e(f"buffer_load_dword v{T+7}, v{T+6}, s[{S_WS}:{S_WS+3}], s{sT0} offen sc1")
    HR = lambda a: T + 8 + 4 * a
    HI = lambda a: T + 10 + 4 * a
    for a in range(2):
        g.e(f"ds_read_b64 {vr(HR(a),2)}, v{EA} offset:{8192+1024*a}")
        g.e(f"ds_read_b64 {vr(HI(a),2)}, v{EA} offset:{12288+1024*a}")
    g.e(f"v_lshrrev_b32 v{T}, 2, v{V_CH}")
    g.e(f"v_lshlrev_b32 v{T}, 8, v{T}")
    g.e(f"v_and_b32 v{T+1}, 3, v{V_CH}")
    g.e(f"v_lshl_add_u32 v{T}, v{T+1}, 4, v{T}")
    g.e(f"v_lshrrev_b32 v{T+1}, 5, v{L}")
    g.e(f"v_lshl_add_u32 v{T}, v{T+1}, 6, v{T}")
    g.e(f"v_add_u32 v{T+1}, 40960, v{T}")
    g.e(f"s_lshl_b32 s{sT0}, s{sC}, 2")
    g.e(f"s_lshl_b32 s{sT1}, s{sWT}, 1")
    g.e(f"s_add_u32 s{sT0}, s{sT0}, s{sT1}")
    g.e(f"s_mul_i32 s{sT0}, s{sT0}, {H_TT}")
    g.e(f"s_add_u32 s{sT0}, s{sT0}, {HT}")
    g.e(f"s_add_u32 s{sT1}, s{sT0}, {H_TT}")
    g.e("s_waitcnt lgkmcnt(0)")
    for a in range(2):
        for k in range(8):
            pw = vr(PW + 2 * k, 2)
            g.e(f"v_pk_fma_f32 {vr(RE(a,k),2)}, {pw}, {vr(HR(a),2)}, {vr(RE(a,k),2)} op_sel_hi:[0,1,1]")
            g.e(f"v_pk_fma_f32 {vr(IM(a,k),2)}, {pw}, {vr(HI(a),2)}, {vr(IM(a,k),2)} op_sel_hi:[0,1,1]")
        for k in range(8):
            pw = vr(PW + 2 * k, 2)
            g.e(f"v_pk_fma_f32 {vr(RE(a,k),2)}, {pw}, {vr(HI(a),2)}, {vr(RE(a,k),2)} op_sel:[1,0,0] op_sel_hi:[1,1,1] neg_lo:[1,0,0] neg_hi:[1,0,0]")
            g.e(f"v_pk_fma_f32 {vr(IM(a,k),2)}, {pw}, {vr(HR(a),2)}, {vr(IM(a,k),2)} op_sel:[1,0,0] op_sel_hi:[1,1,1]")
        for e in range(2):
            for part in range(2):
                base = RE(a, 0) if part == 0 else IM(a, 0)
                d = FS[0] + 4 * (4 * a + 2 * e + part)
                ng = "-" if part else ""
                for n in range(4):
                    g.e(f"v_cvt_pk_bf16_f32 v{d+n}, {ng}v{base+4*n+e}, {ng}v{base+4*n+2+e}")
                g.e(f"buffer_store_dwordx4 {vr(d,4)}, v{T+part}, s[{S_WS}:{S_WS+3}], s{sT0+a} offen offset:{128*e} {hst}")
    g.e(f"s_lshl_b32 s{sT0}, s{sC}, {FP+4}")
    g.e(f"s_lshl_b32 s{sT1}, s{sCB}, {FP}")
    g.e(f"s_add_u32 s{sT0}, s{sT0}, s{sT1}")
    g.e(f"s_add_u32 s{sT0}, s{sT0}, {F_H}")
    g.e("s_waitcnt vmcnt(0)")
    g.e("s_barrier")
    g.e(f"s_cmp_lg_u32 s{sWV}, 0")
    g.e(f"s_cbranch_scc1 {pfx}_end")
    if local:
        g.e(f"v_cmp_ne_u32 vcc, s{S_XCC}, v{T+7}")
        g.e("s_nop 4")
        g.e(f"s_cbranch_vccz {pfx}_loc")
        g.e("buffer_wbl2 sc1")
        g.e("s_waitcnt vmcnt(0)")
        g.lab(f"{pfx}_loc")
    put_flag(g, S_WS, sT0, T)
    g.lab(f"{pfx}_end")
    if "noscan" in dbg:
        g.e = e0
    stamp(g, 4)


G2SLOT = 24576


def g2(g, treg, pfx="g2", prio_s=None, nt="", rot=True, hld="sc1", dbg="", la=3, earlyd=True, pollx=None):
    S_X, S_CR, S_WS, S_CI = 8, 12, 16, 20
    sC, sCB, sHO, sXB, sCO, sM0, sM2, sT0, sT1, sWT, sWC, sK = range(25, 37)
    sWV = S_WAVE
    L, T = V_LANE, V_T
    V_HD, V_HA = 9, 7
    DG = ACC + 32
    g.e(f"s_load_dwordx2 s[40:41], s[0:1], {KA['A_x']}")
    g.e(f"s_load_dwordx4 s[44:47], s[0:1], {KA['C_re']}")
    g.e(f"s_load_dwordx2 s[48:49], s[0:1], {KA['out']}")
    g.e(f"s_load_dwordx2 s[54:55], s[0:1], {KA['Dskip']}")
    g.e(f"s_load_dwordx2 s[62:63], s[0:1], {KA['ws']}")
    lane(g, L)
    tile_decode(g, treg, sC, sCB, sT0)
    g.e(f"s_lshr_b32 s{sWT}, s{sWV}, 1")
    g.e(f"s_and_b32 s{sWC}, s{sWV}, 1")
    set_ch(g, sCB, sWC, sT0, sT1, T + 4)
    g.e(f"v_lshlrev_b32 v{T+5}, 1, v{V_CH}")
    g.e(f"v_lshlrev_b32 v{V_HD}, 4, v{L}")
    g.e(f"s_lshl_b32 s{sT0}, s{sC}, 2")
    g.e(f"s_add_u32 s{sT0}, s{sT0}, s{sWV}")
    g.e(f"s_mul_i32 s{sHO}, s{sT0}, {H_TT}")
    g.e(f"s_add_u32 s{sHO}, s{sHO}, {HT}")
    g.e(f"s_mul_i32 s{sCO}, s{sCB}, {64*1280}")
    g.e(f"s_and_b32 s{sK}, s{sC}, 1")
    g.e(f"s_mul_i32 s{sK}, s{sK}, 5")
    g.e(f"s_add_u32 s{sK}, s{sK}, s{sCB}")
    g.e(f"s_cmp_ge_u32 s{sK}, 10")
    g.e(f"s_cselect_b32 s{sT0}, 10, 0")
    g.e(f"s_sub_u32 s{sK}, s{sK}, s{sT0}")
    if not rot:
        g.e(f"s_mov_b32 s{sK}, 0")
    g.e(f"s_lshl_b32 s{sT0}, s{sK}, 12")
    g.e(f"s_add_u32 s{sHO}, s{sHO}, s{sT0}")
    g.e(f"s_lshl_b32 s{sT0}, s{sK}, 7")
    g.e(f"s_add_u32 s{sCO}, s{sCO}, s{sT0}")
    g.e(f"s_lshl_b32 s{sM0}, s{sWV}, 12")
    g.e(f"s_lshl_b32 s{sM2}, s{sWV}, 11")
    g.e(f"s_add_u32 s{sM2}, s{sM2}, 16384")
    g.e(f"s_mul_i32 s{sXB}, s{sC}, {128*1280}")
    g.e(f"s_lshl_b32 s{sT0}, s{sCB}, 7")
    g.e(f"s_add_u32 s{sXB}, s{sXB}, s{sT0}")
    g.e(f"s_mul_i32 s{sT0}, s{sWV}, {32*1280}")
    direct_dma_voff(g, V_XD, L, T, T + 1, 1280, 4, sT0)
    g.e(f"s_mul_i32 s{sT0}, s{sWV}, {16*1280}")
    direct_dma_voff(g, V_YD, L, T, T + 1, 1280, 2, sT0)
    g.e("s_waitcnt lgkmcnt(0)")
    g.e(f"global_load_ushort v{T+6}, v{T+5}, s[54:55]")
    srd(g, S_X, 40, 2048 * 1280)
    srd(g, S_CR, 44, 640 * 1280)
    srd(g, S_CI, 46, 640 * 1280)
    srd(g, S_WS, 62, WS_USED)
    g.e(f"s_lshl_b32 s{sT0}, s{sWT}, 6")
    g.e(f"v_add_u32 v{T+1}, s{sT0}, v{T+4}")
    g.e(f"v_lshrrev_b32 v{T+2}, 5, v{L}")
    direct_rd_addr(g, V_XA, T + 1, T + 2, T + 3, hi=2 * G2SLOT)
    g.e(f"v_add_u32 v{T+1}, s{sT1}, v{T+4}")
    direct_rd_addr(g, V_YA, T + 1, T + 2, T + 3, hi=2 * G2SLOT)
    g.e(f"v_lshlrev_b32 v{T+1}, 9, v{T+2}")
    g.e(f"v_bfe_u32 v{T+3}, v{L}, 1, 1")
    g.e(f"v_lshl_add_u32 v{T+1}, v{T+3}, 7, v{T+1}")
    g.e(f"v_bfe_u32 v{T+3}, v{L}, 4, 1")
    g.e(f"v_lshl_add_u32 v{T+1}, v{T+3}, 6, v{T+1}")
    g.e(f"v_bfe_u32 v{T+3}, v{L}, 2, 2")
    g.e(f"v_lshl_add_u32 v{T+1}, v{T+3}, 4, v{T+1}")
    g.e(f"v_and_b32 v{T+3}, 1, v{L}")
    g.e(f"v_lshl_add_u32 v{T+1}, v{T+3}, 3, v{T+1}")
    g.e(f"s_lshl_b32 s{sT0}, s{sWT}, 13")
    g.e(f"v_add_u32 v{V_HA}, s{sT0}, v{T+1}")
    g.e(f"v_add_u32 v{V_HA+1}, {2*G2SLOT}, v{V_HA}")
    g.e(f"v_and_b32 v{T+1}, 63, v{V_CH}")
    g.e(f"v_and_b32 v{T+3}, 1, v{T+1}")
    g.e(f"v_lshlrev_b32 v{T+3}, 4, v{T+3}")
    g.e(f"v_lshrrev_b32 v{T+1}, 1, v{T+1}")
    g.e(f"v_lshlrev_b32 v{T+2}, 2, v{T+2}")
    g.e(f"v_sub_u32 v{T+1}, v{T+1}, v{T+2}")
    g.e("s_waitcnt vmcnt(0)")
    g.e(f"v_lshlrev_b32 v{T+3}, v{T+3}, v{T+6}")
    for s in range(4):
        for q in range(4):
            g.e(f"v_cmp_eq_u32 s[{40+2*q}:{41+2*q}], {8*s+q}, v{T+1}")
        for q in range(4):
            g.e(f"v_cndmask_b32 v{DG+4*s+q}, 0, v{T+3}, s[{40+2*q}:{41+2*q}]")
    g.e(f"s_cmp_lg_u32 s{sWV}, 0")
    g.e(f"s_cbranch_scc1 {pfx}_wait")
    g.e(f"s_lshl_b32 s{sT0}, s{sC}, {FP+4}")
    g.e(f"s_add_u32 s{sT0}, s{sT0}, {F_H}")
    g.e(f"v_and_b32 v{T+8}, 15, v{L}")
    g.e(f"v_cmp_gt_u32 s[58:59], 10, v{T+8}")
    g.e(f"v_lshlrev_b32 v{T+8}, {FP}, v{T+8}")
    g.e(f"v_add_u32 v{T+8}, s{sT0}, v{T+8}")
    poll_flags(g, S_WS, T + 8, T + 9, pfx + "h", sleep=8, extra=pollx)
    g.lab(f"{pfx}_wait")
    g.e("s_barrier")
    stamp(g, 5)
    if prio_s:
        prio_s()
    g.e("s_mov_b32 s38, 128")

    def off(slot, extra):
        return (True, extra) if slot == 2 else (False, slot * G2SLOT + extra)

    def dma(stage, slot):
        o = [f"s_add_u32 m0, s{sM0}, {slot*G2SLOT}\ns_nop 0"]
        if stage == 20:
            for i in range(4):
                o.append(f"buffer_load_dwordx4 v{V_XD+i}, s[{S_X}:{S_X+3}], s{sXB} offen offset:{1024*i} lds")
            return o
        for i in range(4):
            o.append(f"buffer_load_dwordx4 v{V_HD}, s[{S_WS}:{S_WS+3}], s{sHO} offen offset:{1024*i} {hld} lds")
        o[-1] += f"\ns_add_u32 m0, s{sM2}, {slot*G2SLOT}"
        S = S_CR if stage < 10 else S_CI
        for i in range(2):
            o.append(("s_nop 0\n" if i == 0 else "") + f"buffer_load_dwordx4 v{V_YD+i}, s[{S}:{S+3}], s{sCO} offen offset:{1024*i} {nt} lds")
        o[-1] += (f"\ns_add_u32 s{sK}, s{sK}, 1\ns_cmp_eq_u32 s{sK}, 10\ns_cselect_b32 s{sK}, 0, s{sK}"
                  f"\ns_cselect_b32 s37, {-9*128}, s38\ns_add_u32 s{sCO}, s{sCO}, s37\ns_lshl_b32 s37, s37, 5\ns_add_u32 s{sHO}, s{sHO}, s37")
        if stage == 9:
            o[-1] += f"\ns_add_u32 s{sHO}, s{sHO}, 40960"
        return o

    def reads(stage, slot, st):
        out = []
        if stage == 20:
            for s in range(4):
                for a in range(2):
                    hi, imm = off(slot, 4096 * a)
                    out.append(f"ds_read_b128 {vr(FS[st]+4*(2*s+a),4)}, v{V_XA+s+(4 if hi else 0)} offset:{imm}")
            return out
        for s in range(4):
            hi, imm = off(slot, 16384)
            out.append(f"ds_read_b128 {vr(FS[st]+32+4*s,4)}, v{V_YA+s+(4 if hi else 0)} offset:{imm}")
            for a in range(2):
                for j in range(2):
                    hi, imm = off(slot, 4096 * a + 1024 * s + 256 * j)
                    out.append(f"ds_read_b64_tr_b16 {vr(FS[st]+4*(2*s+a)+2*j,2)}, v{V_HA+(1 if hi else 0)} offset:{imm}")
        return out

    def mf2(s, st):
        out = []
        for ks in range(4):
            for a in range(2):
                B = FS[st] + 32 + 4 * ks if s < 20 else DG + 4 * ks
                out.append(mfma16(ACC + 16 * a, FS[st] + 4 * (2 * ks + a), B, "0" if (s == 0 and ks == 0) else None))
        return out

    if "noc" in dbg or "noh" in dbg:
        dma0 = dma
        def dma(stage, slot):
            o = dma0(stage, slot)
            r = []
            for x in o:
                ls = x.split("\n")
                for ln in ls:
                    if ln.startswith("buffer_load") and stage < 20:
                        isH = f"v{V_HD}," in ln
                        if (isH and "noh" in dbg) or ((not isH) and "noc" in dbg):
                            ln = ln.replace(f"s{sHO} ", "0 ").replace(f"s{sCO} ", "0 ")
                    r.append(ln)
            return ["\n".join(r[:2])] + r[2:]
    if "nord" in dbg:
        reads0 = reads
        reads = lambda a, b, c: reads0(a, b, c)[:2]
    if "nomf" in dbg:
        mf0 = mf2
        mf2 = lambda a, b: ["s_nop 0"] * 8
    gemm_core1(g, 21, Chunk(lambda stg: 6 if stg < 20 else 4, dma, reads), mf2, la=la, early=earlyd)
    stamp(g, 6)
    S_OUT = 12
    srd(g, S_OUT, 48, 2048 * 5120)
    g.e(f"v_lshrrev_b32 v{T}, 5, v{L}")
    g.e(f"v_mul_u32_u24 v{T}, {4*5120}, v{T}")
    g.e(f"v_lshl_add_u32 v{T}, v{V_CH}, 2, v{T}")
    for i in range(1, 4):
        g.e(f"v_add_u32 v{T+i}, {5120*i}, v{T}")
    g.e(f"s_lshl_b32 s{sT0}, s{sC}, 1")
    g.e(f"s_add_u32 s{sT0}, s{sT0}, s{sWT}")
    g.e(f"s_mul_i32 s{sT0}, s{sT0}, {64*5120}")
    g.e("s_nop 4")
    for a in range(2):
        for j in range(4):
            for i in range(4):
                g.e(f"buffer_store_dword v{ACC+16*a+4*j+i}, v{T+i}, s[{S_OUT}:{S_OUT+3}], s{sT0} offen")
            g.e(f"s_add_u32 s{sT0}, s{sT0}, {8*5120}")
    g.e("s_barrier")


def g2_announce(g, treg, vt=30):
    g.e(f"s_load_dwordx2 s[40:41], s[0:1], {KA['ws']}")
    tile_decode(g, treg, 43, 44, 45)
    g.e(f"s_lshl_b32 s43, s43, {FP+4}")
    g.e(f"s_lshl_b32 s44, s44, {FP}")
    g.e("s_add_u32 s43, s43, s44")
    g.e(f"s_add_u32 s43, s43, {F_CA}")
    g.e("s_waitcnt lgkmcnt(0)")
    srd(g, 8, 40, WS_USED)
    put_flag(g, 8, 43, vt, S_XCC)
```

```python
from common import *

SPIN_MAX = 100000
S_WAVE = 64
S_NONCE = 65
S_ROLE = 66
FP = 7
F_AGG = FLG
F_H = FLG + 0x10000
F_G3 = FLG + 0x18000
F_O = FLG + 0x20000


def lane(g, v):
    g.e(f"v_mbcnt_lo_u32_b32 v{v}, -1, 0")
    g.e(f"v_mbcnt_hi_u32_b32 v{v}, -1, v{v}")


def get_nonce(g, srd_dbg, vt, pfx):
    g.e(f"v_mov_b32 v{vt}, 0")
    g.e(f"s_mov_b32 s67, {SPIN_MAX}")
    g.lab(f"{pfx}_nonce")
    g.e(f"buffer_load_dword v{vt+1}, v{vt}, s[{srd_dbg}:{srd_dbg+3}], 0 offen sc1")
    g.e("s_waitcnt vmcnt(0)")
    g.e(f"v_readfirstlane_b32 s{S_NONCE}, v{vt+1}")
    g.e("s_nop 3")
    g.e(f"s_cmp_lg_u32 s{S_NONCE}, 0")
    g.e(f"s_cbranch_scc1 {pfx}_nonce_ok")
    g.e("s_sleep 2")
    g.e("s_sub_u32 s67, s67, 1")
    g.e("s_cmp_lg_u32 s67, 0")
    g.e(f"s_cbranch_scc1 {pfx}_nonce")
    g.lab(f"{pfx}_nonce_ok")


def put_nonce(g, vt, sT=56):
    g.e(f"s_load_dwordx2 s[{sT}:{sT+1}], s[0:1], {KA['dbg']}")
    g.e(f"s_memrealtime s[{sT+4}:{sT+5}]")
    g.e("s_waitcnt lgkmcnt(0)")
    g.e(f"s_mov_b32 s{sT+2}, 256")
    g.e(f"s_mov_b32 s{sT+3}, 0x{SRD3:08x}")
    g.e(f"s_lshl_b32 s{sT+6}, s{sT+4}, 3")
    g.e(f"s_or_b32 s{sT+6}, s{sT+6}, 8")
    g.e(f"v_mov_b32 v{vt}, 0")
    g.e(f"v_mov_b32 v{vt+1}, s{sT+6}")
    g.e(f"buffer_store_dword v{vt+1}, v{vt}, s[{sT}:{sT+3}], 0 offen sc1")


def poll_flags(g, srd_ws, voff, vt, pfx, sleep=4, mask=True, extra=None):
    g.e(f"s_mov_b32 s67, {SPIN_MAX}")
    g.lab(f"{pfx}_poll")
    if extra: g.e(extra)
    g.e(f"buffer_load_dword v{vt}, v{voff}, s[{srd_ws}:{srd_ws+3}], 0 offen sc1")
    g.e("s_waitcnt vmcnt(0)")
    g.e(f"v_cmp_ne_u32 vcc, s{S_NONCE}, v{vt}")
    if mask:
        g.e("s_and_b64 vcc, vcc, s[58:59]")
    else:
        g.e("s_nop 4")
    g.e(f"s_cbranch_vccz {pfx}_poll_ok")
    if sleep:
        g.e(f"s_sleep {sleep}")
    g.e("s_sub_u32 s67, s67, 1")
    g.e("s_cmp_lg_u32 s67, 0")
    g.e(f"s_cbranch_scc1 {pfx}_poll")
    g.lab(f"{pfx}_poll_ok")


def put_flag(g, srd_ws, s_addr, vt, s_val=None):
    g.e(f"v_mov_b32 v{vt}, s{s_addr}")
    g.e(f"v_mov_b32 v{vt+1}, s{S_NONCE if s_val is None else s_val}")
    g.e("s_mov_b64 exec, 1")
    g.e(f"buffer_store_dword v{vt+1}, v{vt}, s[{srd_ws}:{srd_ws+3}], 0 offen sc1")
    g.e("s_mov_b64 exec, -1")

F_GG = FLG + 0x28000
F_CA = FLG + 0x30000
S_XCC = 69


def nonce_fix(g):
    g.e(f"s_getreg_b32 s{S_XCC}, hwreg(HW_REG_XCC_ID, 0, 3)")

F_CU = FLG + 0x38000


def cu_flag_addr(g, sd, st):
    g.e(f"s_getreg_b32 s{sd}, hwreg(HW_REG_HW_ID, 8, 8)")
    g.e(f"s_and_b32 s{sd}, s{sd}, 127")
    g.e(f"s_getreg_b32 s{st}, hwreg(HW_REG_XCC_ID, 0, 3)")
    g.e(f"s_lshl_b32 s{st}, s{st}, 7")
    g.e(f"s_add_u32 s{sd}, s{sd}, s{st}")
    g.e(f"s_lshl_b32 s{sd}, s{sd}, 6")
    g.e(f"s_add_u32 s{sd}, s{sd}, {F_CU}")


def wait_cu_flag(g, srd_ws, vt, pfx, maxpoll=400, extra=None):
    cu_flag_addr(g, 39, 67)
    g.e(f"v_mov_b32 v{vt}, s39")
    g.e(f"s_mov_b32 s67, {maxpoll}")
    g.lab(f"{pfx}_poll")
    if extra: g.e(extra)
    g.e(f"buffer_load_dword v{vt+1}, v{vt}, s[{srd_ws}:{srd_ws+3}], 0 offen sc1")
    g.e("s_waitcnt vmcnt(0)")
    g.e(f"v_cmp_ne_u32 vcc, s{S_NONCE}, v{vt+1}")
    g.e("s_nop 4")
    g.e(f"s_cbranch_vccz {pfx}_ok")
    g.e("s_sleep 4")
    g.e("s_sub_u32 s67, s67, 1")
    g.e("s_cmp_lg_u32 s67, 0")
    g.e(f"s_cbranch_scc1 {pfx}_poll")
    g.lab(f"{pfx}_ok")
```

```python
import sys
import common
if '--stamps' in sys.argv: common.STAMPS = True; sys.argv.remove('--stamps')
OPT = dict(x[2:].split("=") if "=" in x else (x[2:], "1") for x in sys.argv if x.startswith('-v'))
sys.argv = [x for x in sys.argv if not x.startswith('-v')]
from common import *
from sync import *
from g3l import *
import attn3
from attn3 import attn
from g4r import *
from ssm2 import g1, g2, g2_announce
from pf import *
from g2b import g2b

HDR = open("cdna_kernels/" + NAME + ".s.ref").read().split("; Override launch")[0]
KN = NAME + "_kernel"


def o(k, d):
    return OPT.get(k, d)


def build():
    g = Asm()
    g.raw(HDR.rstrip())
    g.raw("; @launch grid=(512,1,1) block=(256,1,1) lds=81920")
    g.raw('.amdgcn_target "amdgcn-amd-amdhsa--gfx950"')
    g.raw(".text")
    g.raw(f".globl {KN}")
    g.raw(".p2align 8")
    g.raw(f".type {KN},@function")
    g.lab(KN)
    g.e("s_cmp_ge_u32 s2, 512")
    g.e("s_cbranch_scc1 L_end")
    code_prefetch(g, KN, int(o("codesz", 45056)), 2, 254, end_label="L_code_end")
    g.e(f"v_readfirstlane_b32 s{S_WAVE}, v0")
    stamp_init(g); stamp_real(g, 14); stamp(g, 0)
    g.e(f"s_lshr_b32 s{S_WAVE}, s{S_WAVE}, 6")
    g.e("s_cmp_ge_u32 s2, 256")
    g.e("s_cbranch_scc1 L_a")
    qd = (attn3.Q16, attn3.QR)
    g3l(g, rot=o("rot", "a"), ntx=o("ntx", ""), ntw=o("ntw", ""), qdst=qd, st=o("kvst", "sc1").replace("-", ""), trig_stage=int(o("ts", -1)))
    attn(g, ldsc=o("atld", "-").replace("+", " ").replace("-", ""), stsc=o("atst", "sc1").replace("+", " "), qread=lambda: g3l_qread(g, qd), niter=int(o("niter", 0)))
    stamp(g, 11)
    stamp_real(g, 15); stamp_flush(g, S_WAVE, 250)
    g.e("s_endpgm")
    g.lab("L_a")
    g.e(f"s_sub_u32 s{S_ROLE}, s2, 256")
    g.e(f"s_lshr_b32 s68, s{S_ROLE}, 3")
    g.e("s_setprio 3")
    g.e(f"s_or_b32 s4, s{S_ROLE}, s{S_WAVE}")
    g.e("s_cmp_lg_u32 s4, 0")
    g.e("s_cbranch_scc1 L_a_n2")
    put_nonce(g, 30)
    g.lab("L_a_n2")
    g.e("s_sub_u32 s60, s68, 20")

    def nonce_ann(pfx, vt, cond):
        g.e(f"s_load_dwordx2 s[44:45], s[0:1], {KA['dbg']}")
        g.e("s_waitcnt lgkmcnt(0)")
        srd(g, 20, 44, 256)
        get_nonce(g, 20, vt, pfx)
        g.e(f"s_getreg_b32 s{S_XCC}, hwreg(HW_REG_XCC_ID, 0, 3)")
        g.e(f"s_or_b32 s{S_XCC}, s{S_XCC}, s{S_NONCE}")

    def wait_g3(S_WS, T, pfx, lanev):
        g.e(f"v_and_b32 v{T}, 15, v{lanev}")
        g.e(f"v_lshlrev_b32 v{T}, {FP}, v{T}")
        g.e(f"s_and_b32 s39, s{S_ROLE}, 15")
        g.e(f"s_lshl_b32 s39, s39, {FP+4}")
        g.e(f"s_add_u32 s39, s39, {F_G3}")
        g.e(f"v_add_u32 v{T}, s39, v{T}")
        g.e(f"s_mov_b32 s67, {SPIN_MAX}")
        g.lab(f"{pfx}_poll")
        g.e(f"buffer_load_dword v{T+1}, v{T}, s[{S_WS}:{S_WS+3}], 0 offen sc1")
        g.e("s_waitcnt vmcnt(0)")
        g.e(f"v_and_b32 v{T+1}, -8, v{T+1}")
        g.e(f"v_cmp_ne_u32 vcc, s{S_NONCE}, v{T+1}")
        g.e("s_nop 4")
        g.e(f"s_cbranch_vccz {pfx}_ok")
        g.e("s_sleep 16")
        g.e("s_sub_u32 s67, s67, 1")
        g.e("s_cmp_lg_u32 s67, 0")
        g.e(f"s_cbranch_scc1 {pfx}_poll")
        g.lab(f"{pfx}_ok")

    def wait_own_t(pfx):
        g.e(f"s_load_dwordx2 s[40:41], s[0:1], {KA['ws']}")
        g.e("s_and_b32 s42, s68, 15")
        g.e(f"s_lshl_b32 s42, s42, {FP+4}")
        g.e(f"s_and_b32 s43, s{S_ROLE}, 7")
        g.e("s_lshl_b32 s43, s43, 1")
        g.e("s_lshr_b32 s44, s68, 4")
        g.e("s_add_u32 s43, s43, s44")
        g.e(f"s_lshl_b32 s43, s43, {FP}")
        g.e("s_add_u32 s42, s42, s43")
        g.e(f"s_add_u32 s42, s42, {F_O}")
        g.e("v_mov_b32 v250, s42")
        g.e("s_waitcnt lgkmcnt(0)")
        srd(g, 8, 40, WS_USED)
        g.e(f"s_cmp_lg_u32 s{S_WAVE}, 0")
        g.e(f"s_cbranch_scc1 {pfx}_w")
        poll_flags(g, 8, 250, 251, pfx, sleep=16, mask=False)
        g.lab(f"{pfx}_w")
        g.e("s_barrier")

    g.e("s_cmp_lt_u32 s68, 20")
    g.e("s_cbranch_scc1 L_a_g1")
    refresh = code_refresh_setup(g, KN, "L_code_end", 60, 30, 124, 6) if o("rf", "1") == "1" else None
    nonce_ann("an", 30, False)
    g.e("s_sub_u32 s61, s68, 20")
    g.e("s_lshl_b32 s61, s61, 3")
    g.e(f"s_and_b32 s4, s{S_ROLE}, 7")
    g.e("s_add_u32 s61, s61, s4")
    g.e("s_lshl_b32 s61, s61, 2")
    g.e(f"s_add_u32 s61, s61, s{S_WAVE}")
    if o("trig", "1") == "1" and o("smp", "1") == "1":
        scalar_mall_prefetch(g, [("B_re", 819200), ("B_im", 819200), ("A_x", 2621440)], 61, 384)
    if o("smp", "1") == "1" and o("smpw", "0") == "0":
        scalar_mall_prefetch(g, [("C_re", 819200), ("C_im", 819200), ("wo", 819200)], 61, 384)
    g.e(f"s_load_dwordx2 s[40:41], s[0:1], {KA['ws']}")
    lane(g, 31)
    g.e("s_waitcnt lgkmcnt(0)")
    srd(g, 8, 40, WS_USED)
    g.e(f"s_cmp_lg_u32 s{S_WAVE}, 0")
    g.e("s_cbranch_scc1 L_a_w")
    wait_cu_flag(g, 8, 32, "aw", extra=refresh)
    g.lab("L_a_w")
    g.e("s_barrier")
    stamp(g, 1)
    if o("smp", "1") == "1" and o("smpw", "0") == "1":
        scalar_mall_prefetch(g, [("C_re", 819200), ("C_im", 819200), ("wo", 819200)], 61, 384)
    if o("cpre", "2") != "0":
        nwv = int(o("cpre", "2"))
        g.e(f"s_cmp_ge_u32 s{S_WAVE}, {nwv}")
        g.e("s_cbranch_scc1 L_a_np")
        g.e("s_sub_u32 s39, s68, 20")
        g.e(f"s_mul_i32 s39, s39, {nwv}")
        g.e(f"s_add_u32 s39, s39, s{S_WAVE}")
        gentle_l2_prefetch(g, ["C_re", "C_im", "wo"], 6400, 39, 12 * nwv, 32)
        g.lab("L_a_np")
    stamp(g, 2)
    g.e("s_branch L_a_g2")
    g.lab("L_a_g1")
    late = o("trig", "1") == "1"
    if late:
        nonce_ann("bn", 30, True)

    def trig(S_WS, T):
        g.e(f"s_cmp_lg_u32 s{S_WAVE}, 0")
        g.e("s_cbranch_scc1 L_trig")
        wait_cu_flag(g, S_WS, T, "tw")
        g.lab("L_trig")
        g.e("s_barrier")

    g1(g, 68, prio=(int(o("p1", 0)), int(o("p1v", 2))), trig=trig if late else None, nt=o("nt1", ""),
       local=o("hloc", "0") == "1", la=(lambda c: int(o("la1", "2")[0]) if c < int(o("la1c", 6)) else int(o("la1", "2")[-1])), dbg=o("g1dbg", ""), earlyd=o("ed", "1") == "1", post=None if late else (lambda: nonce_ann("bn", 60, True)))
    if o("iso", "0") == "1":
        wait_own_t("iso1")
    g.e("s_branch L_a_g4")
    g.lab("L_a_g2")

    def prio2():
        g.e(f"s_setprio {o('p2', 0)}")

    g.e("s_cmp_ge_u32 s60, 10")
    g.e("s_cbranch_scc1 L_a_end")
    g2b(g, 60, prio_s=prio2, hld=o("hld", "-").replace("-", ""), la=int(o("la2", 3)), earlyd=o("ed2", "1") == "1", pollx=refresh)
    g.e("s_branch L_a_end")
    g.lab("L_a_g4")
    g.e("s_mov_b32 s60, s68")
    g.e("s_setprio 3")
    g4_preload(g, 60)
    rf2 = code_refresh_setup(g, KN, "L_code_end", 68, 18, 244, 6) if o("rf", "1") == "1" else None
    g4_main(g, pollx=rf2)
    g.lab("L_a_end")
    if common.STAMPS:
        g.e("s_waitcnt vmcnt(0)")
    stamp(g, 12)
    stamp_real(g, 15); stamp_flush(g, S_WAVE, 250)
    g.lab("L_end")
    g.e("s_endpgm")
    g.lab("L_code_end")
    g.raw('.section .rodata,"a"')
    g.raw(".p2align 6")
    g.raw(kernel_tail(KN, nsgpr=96))
    return g.text()


if __name__ == "__main__":
    out = sys.argv[1] if len(sys.argv) > 1 else "f.s"
    open(out, "w").write(build())
```
